```python
import torch

def _softmax(x, axis=-1):
    return torch.softmax(x, dim=axis)
def _gelu(x):
    return torch.nn.functional.gelu(x, approximate="tanh")
def _silu(x):
    return torch.nn.functional.silu(x)
def _sigmoid(x):
    return torch.sigmoid(x)
def _layernorm(x, axis=-1, eps=1e-5):
    m = x.mean(dim=axis, keepdim=True)
    v = x.var(dim=axis, keepdim=True, unbiased=False)
    return (x - m) / torch.sqrt(v + eps)
def _scatter_add(tgt, idx, src, axis=0):
    return tgt.clone().index_add_(axis, idx, src)
def _segment_sum(src, seg, n):
    out = torch.zeros((n,) + src.shape[1:], dtype=src.dtype)
    return out.index_add_(0, seg, src)
def _pad(x, pw):
    flat = tuple(v for pair in reversed(pw) for v in pair)
    return torch.nn.functional.pad(x, flat)

kernel_name = 'gated_mix__sliding_block__dense_activation_relu__prompt'

def setup_inputs():

    _w = (lambda a: (lambda t: t.to(torch.bfloat16) if t.is_floating_point() else t)(torch.as_tensor(a)))
    def _A_setup():
        B, S, D = 1, 2048, 640
        return {
            "x": _w((lambda *s: torch.randn(*s, dtype=torch.bfloat16) * 0.05)(B, S, D)),
            "wqkv": _w((lambda *s: torch.randn(*s, dtype=torch.bfloat16) * 0.8)(D, 3 * D)),
            "wo": _w((lambda *s: torch.randn(*s, dtype=torch.bfloat16) * 0.05)(D, D)),
        }
    _A_in = _A_setup()

    def _B_setup():
        B, S, D, Dff = 1, 2048, 640, 1728
        return {
            "x": _w((lambda *s: torch.randn(*s, dtype=torch.bfloat16) * 0.05)(B, S, D)),
            "w1": _w((lambda *s: torch.randn(*s, dtype=torch.bfloat16) * 0.1)(D, Dff)),
            "w2": _w((lambda *s: torch.randn(*s, dtype=torch.bfloat16) * 0.1)(Dff, D)),
        }
    _B_in = _B_setup()

    return {
        "A_x": _A_in["x"],
        "A_wqkv": _A_in["wqkv"],
        "A_wo": _A_in["wo"],
        "B_x": _B_in["x"],
        "B_w1": _B_in["w1"],
        "B_w2": _B_in["w2"],
        "gate_w": _w((lambda *s: torch.randn(*s, dtype=torch.bfloat16) * 0.05)(640) * 16.0),
    }

def reference(A_x, A_wqkv, A_wo, B_x, B_w1, B_w2, gate_w):
    def _A_ref(x, wqkv, wo):
        B, S, D = x.shape
        H = 32; Dh = D // H; W = 256
        qkv = (lambda x, *d: x.permute(*d))((x @ wqkv).reshape(B, S, 3, H, Dh), 2, 0, 3, 1, 4)
        q, k, v = qkv[0], qkv[1], qkv[2]
        scores = torch.einsum("bhqd,bhkd->bhqk", q, k) * (Dh ** -0.5)
        idx = torch.arange(S)
        mask = (idx[:, None] - idx[None, :] >= 0) & (idx[:, None] - idx[None, :] < W)
        scores = torch.where(mask[None, None], scores, -1e9)
        p = _softmax(scores, axis=-1)
        o = torch.einsum("bhqk,bhkd->bhqd", p, v)
        return (lambda x, *d: x.permute(*d))(o, 0, 2, 1, 3).reshape(B, S, D) @ wo

    def _B_ref(x, w1, w2):
        h = torch.einsum("bsd,df->bsf", x, w1)
        zero = torch.zeros_like(h)
        h = torch.maximum(h, zero)
        return torch.einsum("bsf,fd->bsd", h, w2)

    x = A_x
    g = _sigmoid((x * gate_w).sum(-1, keepdims=True))
    a = _A_ref(x, A_wqkv, A_wo)
    b = _B_ref(x, B_w1, B_w2)
    return g * a + (1 - g) * b
```

```python
import re

TRANS = ("v_exp_f32", "v_log_f32", "v_rcp_f32", "v_rsq_f32", "v_sqrt_f32", "v_sin_f32", "v_cos_f32",
         "v_rcp_iflag_f32")


def regs_of(tok):
    tok = tok.strip()
    neg = tok.lstrip("-")
    if neg.startswith("abs(") and neg.endswith(")"):
        neg = neg[4:-1]
    if neg.startswith("|") and neg.endswith("|"):
        neg = neg[1:-1]
    m = re.fullmatch(r"([vas])(\d+)", neg)
    if m:
        return [(m.group(1), int(m.group(2)))]
    m = re.fullmatch(r"([vas])\[(\d+):(\d+)\]", neg)
    if m:
        return [(m.group(1), i) for i in range(int(m.group(2)), int(m.group(3)) + 1)]
    if neg == "vcc":
        return [("s", "vcc")]
    if neg in ("vcc_lo", "vcc_hi"):
        return [("s", "vcc")]
    if neg in ("exec", "exec_lo", "exec_hi"):
        return [("s", "exec")]
    if neg == "m0":
        return [("s", "m0")]
    return []


def split_ops(rest):
    ops, depth, cur = [], 0, ""
    for ch in rest:
        if ch in "[(":
            depth += 1
        if ch in "])":
            depth -= 1
        if ch == "," and depth == 0:
            ops.append(cur.strip())
            cur = ""
        else:
            cur += ch
    if cur.strip():
        ops.append(cur.strip())
    return ops


class Ins:
    __slots__ = ("text", "op", "kind", "rd", "wr", "tag", "passes", "srcA", "srcC", "dst", "wide", "lds", "dpp",
                 "data", "pseudo", "arg")

    def __init__(self, text, tag=None):
        self.text = text
        self.tag = tag
        self.pseudo = None
        self.arg = None
        self.passes = 0
        self.srcA = set()
        self.srcC = []
        self.dst = []
        self.wide = False
        self.lds = False
        self.dpp = False
        self.data = set()
        t = text.split(";")[0].strip()
        if t.endswith(":") or t.startswith(".") or not t:
            self.op = t
            self.kind = "label" if t.endswith(":") else "dir"
            self.rd, self.wr = set(), set()
            return
        sp = t.split(None, 1)
        op = sp[0]
        self.op = op
        rest = sp[1] if len(sp) > 1 else ""
        ops = split_ops(rest)
        mods = []
        if ops:
            last = ops[-1].split()
            ops[-1] = last[0] if last else ""
            mods = last[1:]
        R = [regs_of(o) for o in ops]
        rd, wr = set(), set()
        if op.startswith("v_mfma"):
            self.kind = "mfma"
            self.passes = 8 if "32x32" in op else 4
            self.dst = R[0]
            wr |= set(R[0])
            self.srcA = set(R[1]) | set(R[2])
            self.srcC = R[3]
            rd |= self.srcA | set(R[3])
        elif op.startswith("ds_read") or op.startswith("ds_bpermute") or op.startswith("ds_swizzle"):
            self.kind = "ds"
            wr |= set(R[0])
            for r in R[1:]:
                rd |= set(r)
        elif op.startswith("ds_write"):
            self.kind = "ds"
            for r in R:
                rd |= set(r)
        elif op.startswith("buffer_load") or op.startswith("global_load"):
            self.kind = "vmem"
            if "lds" in mods:
                self.lds = True
                for r in R:
                    rd |= set(r)
                rd.add(("s", "m0"))
            else:
                wr |= set(R[0])
                for r in R[1:]:
                    rd |= set(r)
        elif op.startswith("buffer_store"):
            self.kind = "vmem"
            for r in R:
                rd |= set(r)
            if op.endswith("x4") or op.endswith("x3"):
                self.wide = True
                self.data = set(R[0])
        elif op.startswith("buffer_atomic"):
            self.kind = "vmem"
            for r in R:
                rd |= set(r)
            if "sc0" in mods:
                wr |= set(R[0])
        elif op in ("buffer_wbl2", "buffer_inv"):
            self.kind = "vmem"
        elif op.startswith("s_load") or op in ("s_memtime", "s_memrealtime"):
            self.kind = "smem"
            wr |= set(R[0])
            for r in R[1:]:
                rd |= set(r)
        elif op in ("s_waitcnt", "s_nop", "s_barrier", "s_endpgm", "s_sleep", "s_setprio"):
            self.kind = "ctl"
        elif op.startswith("s_branch") or op.startswith("s_cbranch"):
            self.kind = "branch"
        elif op.startswith("s_cmp") or op.startswith("s_bitcmp"):
            self.kind = "salu"
            for r in R:
                rd |= set(r)
        elif op.startswith("s_"):
            self.kind = "salu"
            wr |= set(R[0])
            for r in R[1:]:
                rd |= set(r)
            if "saveexec" in op:
                wr.add(("s", "exec"))
        elif op.startswith("v_"):
            self.kind = "valu"
            if any(m.startswith(("quad_perm", "row_", "wave_")) for m in mods) or op.endswith("_dpp"):
                self.dpp = True
            wr |= set(R[0])
            k = 1
            if op.startswith(("v_add_co", "v_sub_co", "v_addc_co", "v_subb_co")):
                wr |= set(R[1])
                k = 2
            for r in R[k:]:
                rd |= set(r)
            if op.startswith(("v_fmac", "v_pk_fmac", "v_dot2c", "v_writelane")) or self.dpp:
                rd |= set(R[0])
            if op.startswith("v_permlane") and "swap" in op:
                rd |= set(R[0])
                wr |= set(R[1])
        else:
            raise ValueError("unknown instruction: " + text)
        self.rd, self.wr = rd, wr


def pseudo(name, arg=None):
    i = Ins("")
    i.kind = "pseudo"
    i.pseudo = name
    i.arg = arg
    return i


class Prog:
    def __init__(self):
        self.items = []

    def __call__(self, text, tag=None):
        for line in text.split("\n"):
            if line.strip():
                self.items.append(Ins(line.strip(), tag))

    def add(self, item):
        if isinstance(item, str):
            self(item)
        elif isinstance(item, Ins):
            self.items.append(item)
        else:
            for x in item:
                self.add(x)

    def wait_tag(self, *tags):
        self.items.append(pseudo("wait_tag", set(tags)))

    def wait_lds(self, *tags):
        self.items.append(pseudo("wait_ldstag", set(tags)))

    def drain(self):
        self("s_waitcnt vmcnt(0) lgkmcnt(0)")

    def raw(self, text):
        self.items.append(pseudo("raw", text))

    def reset(self):
        self.items.append(pseudo("reset"))

    def finalize(self):
        out = self._waits(self.items)
        out = self._hazards(out)
        lines = []
        for i in out:
            if i.kind == "pseudo":
                if i.pseudo == "raw":
                    lines.append(i.arg)
                continue
            lines.append(i.text if i.kind in ("label", "dir") else "    " + i.text)
        return "\n".join(lines) + "\n"

    @staticmethod
    def _waits(items):
        out = []
        vm, lg = [], []

        def emit(nv, nl):
            s = []
            if nv is not None:
                s.append("vmcnt(%d)" % nv)
                del vm[:max(0, len(vm) - nv)]
            if nl is not None:
                s.append("lgkmcnt(%d)" % nl)
                del lg[:max(0, len(lg) - nl)]
            if s:
                out.append(Ins("s_waitcnt " + " ".join(s)))

        def need(q, idx, cap):
            if idx is None:
                return None
            return min(len(q) - 1 - idx, cap)

        for it in items:
            if it.kind == "pseudo":
                if it.pseudo == "wait_tag":
                    idx = max([k for k, e in enumerate(vm) if e[1] in it.arg], default=None)
                    emit(need(vm, idx, 63), None)
                elif it.pseudo == "wait_ldstag":
                    idx = max([k for k, e in enumerate(lg) if e[1] in it.arg], default=None)
                    n = need(lg, idx, 15)
                    if n is not None and any(e[2] for e in lg):
                        n = 0
                    emit(None, n)
                elif it.pseudo == "reset":
                    vm.clear()
                    lg.clear()
                    out.append(it)
                else:
                    out.append(it)
                continue
            if it.op == "s_waitcnt":
                m = re.search(r"vmcnt\((\d+)\)", it.text)
                if m:
                    del vm[:max(0, len(vm) - int(m.group(1)))]
                m = re.search(r"lgkmcnt\((\d+)\)", it.text)
                if m:
                    n = int(m.group(1))
                    if n == 0 or not any(e[2] for e in lg):
                        del lg[:max(0, len(lg) - n)]
                out.append(it)
                continue
            touch = it.rd | it.wr
            if touch:
                iv = max([k for k, e in enumerate(vm) if e[0] & touch], default=None)
                il = max([k for k, e in enumerate(lg) if e[0] & touch], default=None)
                if iv is not None and it.kind == "vmem" and not any(e[0] & it.rd for e in vm):
                    iv = None
                if il is not None and it.kind == "ds" and not any(e[0] & it.rd for e in lg) \
                        and not any(e[2] for e in lg):
                    il = None
                nl = need(lg, il, 15)
                if nl is not None and any(e[2] for e in lg):
                    nl = 0
                emit(need(vm, iv, 63), nl)
            out.append(it)
            if it.kind == "vmem":
                vm.append((set(it.wr), it.tag, False))
                assert len(vm) <= 63, "more than 63 vmem ops outstanding: " + it.text
            elif it.kind == "ds":
                lg.append((set(it.wr), it.tag, False))
            elif it.kind == "smem":
                lg.append((set(it.wr), it.tag, True))
        return out

    @staticmethod
    def _hazards(items):
        out = []
        hist = []

        def required(p, c):
            n = 0
            vecw = {r for r in p.wr if r[0] in "va"}
            sw = {r for r in p.wr if r[0] == "s"}
            if p.kind == "valu":
                if c.kind == "mfma" and vecw & c.rd:
                    n = max(n, 2)
                if p.op in TRANS and c.kind == "valu" and c.op not in TRANS and vecw & c.rd:
                    n = max(n, 1)
                if p.op in TRANS and c.kind in ("vmem", "ds") and vecw & c.rd:
                    n = max(n, 1)
                if c.kind == "valu" and sw & c.rd:
                    n = max(n, 4 if c.op.startswith(("v_readlane", "v_writelane")) else 2)
                if c.kind == "vmem" and sw & c.rd:
                    n = max(n, 5)
                if c.kind in ("salu", "branch") and (sw & c.rd or (c.kind == "branch" and "vcc" in c.op and
                                                                   ("s", "vcc") in sw)):
                    n = max(n, 1)
                if c.op.startswith(("v_readfirstlane", "v_readlane")) and vecw & c.rd:
                    n = max(n, 1)
                if (c.op.startswith("v_permlane") or c.dpp) and vecw & c.rd:
                    n = max(n, 2)
                if "op_sel" in p.text and not p.op.startswith("v_pk_") and c.kind == "valu" and vecw & (c.rd | c.wr):
                    n = max(n, 1)
                if "sdwa" in p.text and c.kind == "valu" and vecw & (c.rd | c.wr):
                    n = max(n, 1)
            if p.kind == "salu" and ("s", "m0") in p.wr and c.kind == "vmem" and c.lds:
                n = max(n, 1)
            if p.kind == "vmem" and p.wide and p.data & c.wr:
                n = max(n, 2)
            if p.kind == "mfma":
                big = {8: 12, 4: 8}[p.passes]
                D = set(p.dst)
                if c.kind == "mfma":
                    if D & c.srcA:
                        n = max(n, big)
                    if D & set(c.srcC):
                        if not (c.srcC == p.dst and c.passes == p.passes):
                            n = max(n, big - 2)
                    elif D & set(c.dst):
                        n = max(n, big - 2)
                elif c.kind in ("valu", "vmem", "ds"):
                    if D & (c.rd | c.wr):
                        n = max(n, big)
                    if c.kind == "valu" and set(p.srcC) & c.wr:
                        n = max(n, {8: 7, 4: 3}[p.passes])
            return n

        for it in items:
            if it.kind == "pseudo":
                if it.pseudo == "reset":
                    hist = []
                out.append(it)
                continue
            if it.kind in ("label", "dir"):
                out.append(it)
                continue
            dist, pad = 0, 0
            for p, st in reversed(hist):
                if dist >= 20:
                    break
                pad = max(pad, required(p, it) - dist)
                dist += st
            if pad > 0:
                nop = Ins("s_nop %d" % (pad - 1))
                out.append(nop)
                hist.append((nop, pad))
            out.append(it)
            st = 1
            if it.op == "s_nop":
                st = int(it.text.split()[1]) + 1
            hist.append((it, st))
            if len(hist) > 40:
                del hist[:10]
        return out


def interleave(main, fill, start=0, end=None, per=None):
    end = len(main) if end is None else end
    n = len(fill)
    span = end - start
    for k, g in enumerate(fill):
        pos = start + (k * span) // n if per is None else min(end - 1, start + k // per)
        main[pos].append(g)
```

```python
import sys, struct, math
from asmlib import Prog, Ins

NAME = "gated_mix__sliding_block__dense_activation_relu__prompt"

PQK = 161 * 128
PHO = 297 * 128
WS_FLAG = 0
WS_G = 16384
WS_TS = 32768
WS_QK = 131072
WS_V = WS_QK + 256 * PQK
WS_HO = WS_V + 256 * 10240
WS_END = WS_HO + 256 * PHO
OOB = 0x80000000
QSCALE = math.log2(math.e) / math.sqrt(20.0)


def f32(x):
    return "0x%08x" % struct.unpack("<I", struct.pack("<f", x))[0]


sX, sWA, sWB, sWS, sW2, sWO, sOUT, sDBG = 8, 12, 16, 20, 24, 28, 32, 36
sGATE = 40
sXCD, sJ, sWAVE = 3, 4, 5
sRB, sCB = 6, 7
sT = 60
sW4K = 70
sOffWA, sOffWB, sOffX = 71, 72, 73
sStA0, sStA1, sStB, sScale = 74, 75, 76, 78
sRB2, sHP = 80, 81
sMB, sNB = 82, 83
sTS = 84
sTSB = 86


def srd(r):
    return "s[%d:%d]" % (r, r + 3)


def vr(a, n=1):
    return "v%d" % a if n == 1 else "v[%d:%d]" % (a, a + n - 1)


def ar(a, n=1):
    return "a%d" % a if n == 1 else "a[%d:%d]" % (a, a + n - 1)


class Gen:
    def __init__(self, split=False, stamps=False, force_slow=False):
        self.split = split
        self.stamps = stamps
        self.force_slow = force_slow
        self.p = Prog()
        self.tail = Prog()
        self.uid = 0
        self.aux = "" if split else " sc1"

    def lab(self, s):
        self.uid += 1
        return "L_%s_%d" % (s, self.uid)

    def csel(self, d, a, b):
        self.p("s_mov_b32 s%d, 0x%x" % (d, b))
        self.p("s_cmov_b32 s%d, 0x%x" % (d, a))

    def stamp(self, k):
        if not self.stamps:
            return
        self.p.raw("    s_memtime s[%d:%d]\n    s_waitcnt lgkmcnt(0)\n    s_mov_b32 s%d, s%d" % (sTS, sTS + 1, 88 + k, sTS))

    def flush_stamps(self, n):
        if not self.stamps:
            return
        p = self.p
        p.drain()
        p("s_lshl_b32 s%d, s2, 2" % sT)
        p("s_add_u32 s%d, s%d, s%d" % (sT, sT, sWAVE))
        p("s_lshl_b32 s%d, s%d, 6" % (sT, sT))
        p("s_add_u32 s%d, s%d, %d" % (sT, sT, WS_TS))
        p("v_mov_b32 v2, s%d" % sT)
        p("s_mov_b64 exec, 1")
        for k in range(n):
            p("v_mov_b32 v3, s%d" % (88 + k))
            p("buffer_store_dword v3, v2, %s, 0 offen offset:%d" % (srd(sWS), 4 * k))
        p("s_getreg_b32 s%d, hwreg(HW_REG_XCC_ID)" % sT)
        p("v_mov_b32 v3, s%d" % sT)
        p("buffer_store_dword v3, v2, %s, 0 offen offset:60" % srd(sWS))
        p("s_mov_b64 exec, -1")

    def prologue(self, nwg, done):
        p = self.p
        p.reset()
        p("s_cmp_ge_u32 s2, %d" % nwg)
        p("s_cbranch_scc1 %s" % done)
        p("s_load_dwordx4 s[44:47], s[0:1], 0")
        p("s_load_dwordx2 s[48:49], s[0:1], 16")
        p("s_load_dwordx4 s[52:55], s[0:1], 32")
        p("s_load_dwordx8 s[60:67], s[0:1], 48")
        p("v_and_b32 v1, 63, v0")
        p("v_lshrrev_b32 v2, 6, v0")
        p("s_and_b32 s%d, s2, 7" % sXCD)
        p("v_readfirstlane_b32 s%d, v2" % sWAVE)
        p("s_lshr_b32 s%d, s2, 3" % sJ)
        p("s_waitcnt lgkmcnt(0)")
        for r, b, n in ((sX, 44, 2048 * 1280), (sWA, 46, 640 * 3840), (sWB, 52, 640 * 3456), (sWS, 66, WS_END),
                        (sW2, 54, 1728 * 1280), (sWO, 48, 640 * 1280), (sOUT, 62, 2048 * 1280), (sDBG, 64, 256),
                        (sGATE, 60, 1280)):
            p("s_mov_b32 s%d, s%d" % (r, b))
            p("s_mov_b32 s%d, s%d" % (r + 1, b + 1))
            p("s_mov_b32 s%d, %d" % (r + 2, n))
            p("s_mov_b32 s%d, 0x20000" % (r + 3))
        p("s_lshl_b32 s%d, s%d, 12" % (sW4K, sWAVE))
        self.stamp(0)

    def signal(self, phase, s_rb, first=False):
        if self.split:
            return
        p = self.p
        p("s_waitcnt vmcnt(0)")
        p("s_barrier")
        skip = self.lab("sig")
        p("s_cmp_lg_u32 s%d, 0" % sWAVE)
        p("s_cbranch_scc1 %s" % skip)
        p("s_mov_b64 exec, 1")
        if first:
            self.spin(srd(sDBG), None, 0, 1)
        p("s_lshl_b32 s%d, s%d, 8" % (sT, s_rb))
        p("v_mov_b32 v2, s%d" % sT)
        p("v_mov_b32 v3, 1")
        p("s_mov_b32 s%d, %d" % (sT, WS_FLAG + phase * 4096))
        p("buffer_atomic_add v3, v2, %s, s%d offen sc1" % (srd(sWS), sT))
        p("s_mov_b64 exec, -1")
        p(skip + ":")
        if first:
            p("s_barrier")

    def spin(self, srd_s, s_idx, base, target):
        p = self.p
        lp, ok = self.lab("spin"), self.lab("ok")
        if s_idx is None:
            p("v_mov_b32 v2, %d" % base)
        else:
            p("s_lshl_b32 s%d, s%d, 8" % (sT, s_idx))
            p("s_add_u32 s%d, s%d, %d" % (sT, sT, base))
            p("v_mov_b32 v2, s%d" % sT)
        p("s_mov_b32 s%d, 200000" % (sT + 1))
        p(lp + ":")
        p("buffer_load_dword v3, v2, %s, 0 offen sc1" % srd_s)
        p("s_waitcnt vmcnt(0)")
        p("v_readfirstlane_b32 s%d, v3" % (sT + 2))
        p("s_sub_u32 s%d, s%d, 1" % (sT + 1, sT + 1))
        p("s_cbranch_scc1 %s" % ok)
        p("s_cmp_ge_u32 s%d, %d" % (sT + 2, target))
        p("s_cbranch_scc1 %s" % ok)
        p("s_sleep 2")
        p("s_branch %s" % lp)
        p(ok + ":")

    def wait_flag(self, phase, s_idx, target):
        if self.split:
            return
        self.spin(srd(sWS), s_idx, WS_FLAG + phase * 4096, target)

    def gate(self):
        p = self.p
        p("s_lshl_b32 s%d, s%d, 1" % (sRB, sXCD))
        p("s_add_u32 s%d, s%d, s%d" % (sRB, sRB, sJ))
        p("s_sub_u32 s%d, s%d, 30" % (sRB, sRB))
        if not self.split:
            skip = self.lab("init")
            p("s_cmp_lg_u32 s2, 240")
            p("s_cbranch_scc1 %s" % skip)
            p("s_cmp_lg_u32 s%d, 0" % sWAVE)
            p("s_cbranch_scc1 %s" % skip)
            p("v_lshlrev_b32 v2, 8, v1")
            p("v_mov_b32 v3, 0")
            p("buffer_store_dword v3, v2, %s, 0 offen sc1" % srd(sWS))
            p("s_waitcnt vmcnt(0)")
            p("v_mov_b32 v4, 1")
            p("s_mov_b64 exec, 1")
            p("buffer_store_dword v4, v3, %s, 0 offen sc1" % srd(sDBG))
            p("s_mov_b64 exec, -1")
            p(skip + ":")
        p("v_and_b32 v4, 15, v1")
        p("v_lshrrev_b32 v5, 4, v1")
        p("v_lshlrev_b32 v6, 4, v4")
        p("v_mul_u32_u24 v7, 1280, v5")
        p("v_add_u32 v7, v7, v6")
        p("s_lshl_b32 s%d, s%d, 2" % (sT, sRB))
        p("s_add_u32 s%d, s%d, s%d" % (sT, sT, sWAVE))
        p("s_mul_i32 s%d, s%d, %d" % (sT + 1, sT, 32 * 1280))
        for i in range(5):
            p("buffer_load_dwordx4 %s, v6, %s, 0 offen offset:%d" % (vr(16 + 4 * i, 4), srd(sGATE), 256 * i))
        for ps in range(8):
            for i in range(5):
                p("buffer_load_dwordx4 %s, v7, %s, s%d offen offset:%d" %
                  (vr(40 + 20 * ps + 4 * i, 4), srd(sX), sT + 1, 256 * i))
            p("s_add_u32 s%d, s%d, %d" % (sT + 1, sT + 1, 4 * 1280))
        p("v_mov_b32 v9, 0")
        for ps in range(8):
            for k in range(20):
                x, g = 40 + 20 * ps + k, 16 + k
                p("v_lshlrev_b32 v12, 16, v%d" % x)
                p("v_lshlrev_b32 v13, 16, v%d" % g)
                p("v_and_b32 v14, 0xffff0000, v%d" % x)
                p("v_and_b32 v15, 0xffff0000, v%d" % g)
                if k == 0:
                    p("v_mul_f32 v10, v12, v13")
                    p("v_mul_f32 v11, v14, v15")
                else:
                    p("v_fmac_f32 v10, v12, v13")
                    p("v_fmac_f32 v11, v14, v15")
            p("v_add_f32 v10, v10, v11")
            for sh in (8, 4, 2, 1):
                p("v_add_f32_dpp v10, v10, v10 row_ror:%d row_mask:0xf bank_mask:0xf" % sh)
            p("v_cmp_eq_u32 vcc, %d, v4" % ps)
            p("v_cndmask_b32 v9, v9, v10, vcc")
        p("v_mul_f32 v9, %s, v9" % f32(-math.log2(math.e)))
        p("v_exp_f32 v9, v9")
        p("v_add_f32 v9, 1.0, v9")
        p("v_rcp_f32 v9, v9")
        p("v_lshl_add_u32 v8, v4, 2, v5")
        p("v_lshlrev_b32 v8, 2, v8")
        p("v_mov_b32 v10, 0x%x" % OOB)
        p("v_cmp_gt_u32 vcc, 8, v4")
        p("v_cndmask_b32 v8, v10, v8, vcc")
        p("s_lshl_b32 s%d, s%d, 7" % (sT, sT))
        p("s_add_u32 s%d, s%d, %d" % (sT, sT, WS_G))
        p("buffer_store_dword v9, v8, %s, s%d offen%s" % (srd(sWS), sT, self.aux))
        self.signal(0, sRB, first=True)

    NW, NX, XB = 5, 4, 81920
    vWA, vWB, vX, vTR, vTR2, vXR = 8, 12, 16, 20, 24, 28
    vStA, vStB, vStB2, vG = 32, 33, 34, 36
    vPk = 40
    vFR = 96
    accA, accB = 128, 192

    def p1_setup(self):
        p = self.p
        T = sT
        p("s_lshr_b32 s%d, s%d, 1" % (T, sXCD))
        p("s_mul_i32 s%d, s%d, 30" % (T, T))
        p("s_add_u32 s%d, s%d, s%d" % (T, T, sJ))
        p("s_lshr_b32 s%d, s%d, 3" % (sCB, T))
        p("s_and_b32 s%d, s%d, 7" % (T, T))
        p("s_and_b32 s%d, s%d, 1" % (T + 1, sXCD))
        p("s_lshl_b32 s%d, s%d, 3" % (T + 1, T + 1))
        p("s_add_u32 s%d, s%d, s%d" % (sRB, T, T + 1))
        p("v_lshrrev_b32 v2, 4, v1")
        p("v_lshlrev_b32 v3, 2, v2")
        p("v_and_b32 v4, 15, v1")
        p("v_xor_b32 v4, v4, v3")
        p("s_lshl_b32 s%d, s%d, 4" % (T, sWAVE))
        p("v_add_u32 v5, s%d, v2" % T)
        p("v_mul_u32_u24 v6, 3840, v5")
        p("v_lshl_add_u32 v%d, v4, 4, v6" % self.vWA)
        for i in range(1, 4):
            p("v_add_u32 v%d, %d, v%d" % (self.vWA + i, i * (4 * 3840 - 1024), self.vWA))
        p("v_lshrrev_b32 v6, 3, v1")
        p("v_mul_u32_u24 v6, 1280, v6")
        p("v_and_b32 v7, 7, v1")
        p("v_xor_b32 v7, v7, v2")
        p("v_lshl_add_u32 v%d, v7, 4, v6" % self.vX)
        p("v_xor_b32 v%d, 64, v%d" % (self.vX + 1, self.vX))
        p("v_add_u32 v%d, %d, v%d" % (self.vX + 2, 2 * (8 * 1280 - 1024), self.vX))
        p("v_add_u32 v%d, %d, v%d" % (self.vX + 3, 3 * (8 * 1280 - 1024), self.vX + 1))
        p("v_add_u32 v%d, %d, v%d" % (self.vX + 1, 1 * (8 * 1280 - 1024), self.vX + 1))
        p("s_lshl_b32 s%d, s%d, 8" % (sOffWA, sCB))
        p("s_lshl_b32 s%d, s%d, 2" % (T + 2, sRB))
        p("s_add_u32 s%d, s%d, s%d" % (T + 2, T + 2, sWAVE))
        p("s_mul_i32 s%d, s%d, %d" % (sOffX, T + 2, 32 * 1280))
        self.issued = set()
        for s in range(4):
            p.add(self.dma_w(s))
            p.add(self.dma_x(s))
        p.add(self.dma_w(4))
        p("v_mul_u32_u24 v6, 3456, v5")
        p("v_lshl_add_u32 v%d, v4, 4, v6" % self.vWB)
        p("s_cmp_ge_u32 s%d, 12" % sCB)
        p("s_cselect_b32 s%d, 8, 16" % T)
        p("s_cselect_b32 s%d, 7, 8" % (T + 1))
        p("s_cselect_b32 s%d, 1536, 0" % (T + 3))
        p("s_cselect_b32 s%d, 0x%x, 0" % (T + 4, OOB))
        p("s_lshl_b32 s%d, s%d, s%d" % (sOffWB, sCB, T + 1))
        p("s_add_u32 s%d, s%d, s%d" % (sOffWB, sOffWB, T + 3))
        p("v_mov_b32 v7, 0x%x" % OOB)
        p("v_cmp_gt_u32 vcc, s%d, v4" % T)
        p("v_cndmask_b32 v%d, v7, v%d, vcc" % (self.vWB, self.vWB))
        for i in range(1, 4):
            p("v_add_u32 v%d, %d, v%d" % (self.vWB + i, i * (4 * 3456 - 1024), self.vWB))
        p("v_lshrrev_b32 v2, 5, v1")
        p("v_bfe_u32 v3, v1, 2, 2")
        p("v_lshl_add_u32 v4, v2, 3, v3")
        p("v_lshlrev_b32 v4, 8, v4")
        p("v_lshl_add_u32 v4, v3, 6, v4")
        p("v_bfe_u32 v5, v1, 4, 1")
        p("v_lshl_add_u32 v4, v5, 5, v4")
        p("v_and_b32 v5, 1, v1")
        p("v_lshl_add_u32 v4, v5, 4, v4")
        p("v_bfe_u32 v5, v1, 1, 1")
        p("v_lshl_add_u32 v%d, v5, 3, v4" % self.vTR)
        for ct in range(1, 4):
            p("v_xor_b32 v%d, %d, v%d" % (self.vTR + ct, ct * 64, self.vTR))
        for ct in range(4):
            p("v_add_u32 v%d, 0x10000, v%d" % (self.vTR2 + ct, self.vTR + ct))
        p("v_and_b32 v3, 31, v1")
        p("v_bfe_u32 v4, v1, 1, 3")
        p("v_xor_b32 v4, v4, v2")
        p("v_lshlrev_b32 v5, 7, v3")
        p("v_lshl_add_u32 v5, v4, 4, v5")
        p("s_add_u32 s%d, s%d, %d" % (T, sW4K, self.XB))
        p("v_add_u32 v%d, s%d, v5" % (self.vXR, T))
        for ks in range(1, 4):
            p("v_xor_b32 v%d, %d, v%d" % (self.vXR + ks, ks * 32, self.vXR))
        p("v_lshrrev_b32 v4, 3, v3")
        p("v_and_b32 v5, 7, v1")
        p("v_lshlrev_b32 v5, 4, v5")
        p("v_lshl_add_u32 v5, v2, 7, v5")
        p("s_mov_b32 s%d, %d" % (T, PHO))
        p("v_mad_u32_u24 v%d, v4, s%d, v5" % (self.vStB, T))
        p("v_or_b32 v%d, s%d, v%d" % (self.vStB2, T + 4, self.vStB))
        p("s_mov_b32 s%d, %d" % (T, PQK))
        p("v_mad_u32_u24 v%d, v4, s%d, v5" % (self.vStA, T))
        p("v_and_b32 v4, 19, v1")
        p("v_bfe_u32 v5, v1, 2, 1")
        p("v_lshl_add_u32 v4, v5, 3, v4")
        p("v_bfe_u32 v5, v1, 3, 1")
        p("v_lshl_add_u32 v4, v5, 2, v4")
        p("v_mul_u32_u24 v5, 10240, v2")
        p("v_lshl_add_u32 v4, v4, 4, v5")
        p("s_cmp_ge_u32 s%d, 10" % sCB)
        p("s_cselect_b64 vcc, -1, 0")
        p("v_cndmask_b32 v%d, v%d, v4, vcc" % (self.vStA, self.vStA))
        self.csel(T, 40960, 4 * PQK)
        self.csel(T + 1, WS_V - 10 * 2048, WS_QK)
        self.csel(T + 3, 20480, 256)
        p("s_mul_i32 s%d, s%d, s%d" % (sStA0, T + 2, T))
        p("s_add_u32 s%d, s%d, s%d" % (sStA0, sStA0, T + 1))
        p("s_lshl_b32 s%d, s%d, 11" % (T, sCB))
        p("s_add_u32 s%d, s%d, s%d" % (sStA0, sStA0, T))
        p("s_add_u32 s%d, s%d, s%d" % (sStA1, sStA0, T + 3))
        p("s_mul_i32 s%d, s%d, %d" % (sStB, T + 2, 4 * PHO))
        p("s_lshl_b32 s%d, s%d, 3" % (T, sOffWB))
        p("s_add_u32 s%d, s%d, s%d" % (sStB, sStB, T))
        p("s_add_u32 s%d, s%d, %d" % (sStB, sStB, WS_HO))
        p("s_cmp_lt_u32 s%d, 5" % sCB)
        p("s_cselect_b32 s%d, %s, 1.0" % (sScale, f32(QSCALE)))
        p("s_mov_b32 s%d, s%d" % (sScale + 1, sScale))

    def dma_w(self, s):
        a = s < 10
        base, off, rs, step = (self.vWA, sOffWA, sWA, 64 * 3840) if a else (self.vWB, sOffWB, sWB, 64 * 3456)
        g = []
        for i in range(4):
            x = []
            if i == 0:
                x.append(Ins("s_add_u32 m0, s%d, %d" % (sW4K, (s % self.NW) * 16384)))
            x.append(Ins("buffer_load_dwordx4 v%d, %s, s%d offen offset:%d lds" % (base + i, srd(rs), off, 1024 * i),
                         tag="W%d" % s))
            if i == 3:
                x.append(Ins("s_add_u32 s%d, s%d, %d" % (off, off, step)))
            g.append(x)
        return g

    def dma_x(self, s):
        g = []
        for i in range(4):
            x = []
            if i == 0:
                x.append(Ins("s_add_u32 m0, s%d, %d" % (sW4K, self.XB + (s % self.NX) * 16384)))
            x.append(Ins("buffer_load_dwordx4 v%d, %s, s%d offen offset:%d lds" % (self.vX + i, srd(sX), sOffX, 1024 * i),
                         tag="X%d" % s))
            if i == 3:
                x.append(Ins("s_add_u32 s%d, s%d, 128" % (sOffX, sOffX)))
            g.append(x)
        return g

    def p1_reads(self, n):
        s, ks, ct = n // 16, (n // 4) % 4, n % 4
        slot = s % self.NW
        base = self.vTR + ct if slot < 4 else self.vTR2 + ct
        off = (slot % 4) * 16384 + ks * 4096
        fr = self.vFR + 4 * (n % 8)
        r = []
        if ct == 0 and s < 10:
            r.append(Ins("ds_read_b128 %s, v%d offset:%d" % (ar(16 * s + 4 * ks, 4), self.vXR + ks, (s % self.NX) * 16384)))
        for i in range(2):
            r.append(Ins("ds_read_b64_tr_b16 %s, v%d offset:%d" % (vr(fr + 2 * i, 2), base, off + 1024 * i)))
        return r

    def p1_mfma(self, n, vrole):
        s, ks, ct = n // 16, (n // 4) % 4, n % 4
        acc = (self.accA if s < 10 else self.accB) + 16 * ct
        w = vr(self.vFR + 4 * (n % 8), 4)
        x = ar(16 * (s % 10) + 4 * ks, 4)
        c = "0" if (s % 10 == 0 and ks == 0) else vr(acc, 16)
        a, b = (x, w) if (vrole and s < 10) else (w, x)
        return Ins("v_mfma_f32_32x32x16_bf16 %s, %s, %s, %s" % (vr(acc, 16), a, b, c))

    def epi_a(self):
        g = []
        for ct in range(4):
            for t in range(2):
                a = self.accA + 16 * ct + 8 * t
                pk = self.vPk + 4 * ((2 * ct + t) % 4)
                for u in range(4):
                    g.append([Ins("v_pk_mul_f32 %s, %s, s[%d:%d]" % (vr(a + 2 * u, 2), vr(a + 2 * u, 2), sScale, sScale + 1))])
                for u in range(4):
                    g.append([Ins("v_cvt_pk_bf16_f32 v%d, v%d, v%d" % (pk + u, a + 2 * u, a + 2 * u + 1))])
                g.append([Ins("buffer_store_dwordx4 %s, v%d, %s, s%d offen offset:%d%s" %
                              (vr(pk, 4), self.vStA, srd(sWS), sStA1 if t else sStA0, 512 * ct, self.aux), tag="stA")])
        return g

    def epi_b(self):
        p = self.p
        for ct in range(4):
            for t in range(2):
                a = self.accB + 16 * ct + 8 * t
                pk = self.vPk + 4 * ((2 * ct + t) % 4)
                for u in range(4):
                    p("v_pk_mul_f32 %s, %s, %s op_sel_hi:[1,0]" % (vr(a + 2 * u, 2), vr(a + 2 * u, 2), vr(self.vG, 2)))
                for u in range(4):
                    p("v_cvt_pk_bf16_f32 v%d, v%d, v%d" % (pk + u, a + 2 * u, a + 2 * u + 1))
                for u in range(4):
                    p("v_pk_max_i16 v%d, v%d, 0" % (pk + u, pk + u))
                p("buffer_store_dwordx4 %s, v%d, %s, s%d offen offset:%d%s" %
                  (vr(pk, 4), self.vStB if ct < 2 else self.vStB2, srd(sWS), sStB, 512 * ct + 256 * t, self.aux))

    def p1_range(self, n0, n1, vrole, extra):
        p = self.p
        LOOK = 4
        for n in range(n0, n1):
            s, m = n // 16, n % 16
            p.add(self.p1_mfma(n, vrole))
            if m == 16 - LOOK and s + 1 < 20:
                p.wait_tag("W%d" % (s + 1), "X%d" % (s + 1))
                p("s_barrier")
            if n + LOOK < 320:
                p.add(self.p1_reads(n + LOOK))
            for g in extra.get(n, []):
                p.add(g)

    def p1_main(self):
        p = self.p
        extra = {}

        def put(n, g):
            extra.setdefault(n, []).append(g)

        for s in range(1, 20):
            n0 = 16 * s - 4
            gs = []
            if 4 < s + 3 < 20:
                gs += self.dma_w(s + 3)
            if 3 < s + 3 < 10:
                gs += self.dma_x(s + 3)
            for k, g in enumerate(gs):
                put(n0 + 1 + (k * 16) // len(gs), g)
        ea = self.epi_a()
        for k, g in enumerate(ea):
            put(164 + k // 2, g)
        p.wait_tag("W0", "X0")
        p("s_barrier")
        for n in range(4):
            p.add(self.p1_reads(n))
        lv, lb = self.lab("vrole"), self.lab("partb")
        p("s_cmp_ge_u32 s%d, 10" % sCB)
        p("s_cbranch_scc1 %s" % lv)
        mark = len(p.items)
        self.p1_range(0, 160, False, extra)
        p(lb + ":")
        keep = self.p
        alt = Prog()
        alt.items = list(keep.items[:mark])
        alt(lv + ":")
        self.p = alt
        self.p1_range(0, 160, True, extra)
        alt("s_branch %s" % lb)
        txt = alt.finalize()
        self.tail.raw(txt[txt.index(lv + ":"):])
        self.p = keep
        self.stamp(1)
        self.p1_range(160, 320, False, extra)
        self.stamp(2)
        self.signal(0, sRB, first=True)
        self.wait_flag(0, sRB, 16)
        p("v_and_b32 v2, 31, v1")
        p("v_lshlrev_b32 v2, 2, v2")
        p("s_lshl_b32 s%d, s%d, 2" % (sT, sRB))
        p("s_add_u32 s%d, s%d, s%d" % (sT, sT, sWAVE))
        p("s_lshl_b32 s%d, s%d, 7" % (sT, sT))
        p("s_add_u32 s%d, s%d, %d" % (sT, sT, WS_G))
        p("buffer_load_dword v%d, v2, %s, s%d offen%s" % (self.vG, srd(sWS), sT, self.aux))
        p("v_sub_f32 v%d, 1.0, v%d" % (self.vG, self.vG))
        self.epi_b()
        self.signal(1, sRB)

    KB, VB = 0, 30720
    vKD, vVD = 8, 12
    vKA, vK2, vVA, vVB = 16, 17, 18, 19
    vQO, vG2 = 20, 21
    rQA, rQB, rQ2A, rQ2B = 24, 28, 32, 34
    rK1, rK2, rV0, rV1 = 36, 40, 44, 48
    rP, rE = 52, 60
    rS = 72
    rO = 104
    rFar, rDiag = 136, 152

    def p2(self):
        p = self.p
        T = sT
        p("s_and_b32 s%d, s%d, 1" % (T, sXCD))
        p("s_lshl_b32 s%d, s%d, 3" % (T, T))
        p("s_and_b32 s%d, s%d, 7" % (T + 1, sJ))
        p("s_add_u32 s%d, s%d, s%d" % (sRB2, T, T + 1))
        p("s_lshr_b32 s%d, s%d, 1" % (T, sXCD))
        p("s_lshl_b32 s%d, s%d, 2" % (T, T))
        p("s_lshr_b32 s%d, s%d, 3" % (T + 1, sJ))
        p("s_add_u32 s%d, s%d, s%d" % (sHP, T, T + 1))
        for b in range(3):
            p("s_sub_u32 s%d, s%d, %d" % (T + 5, sRB2, b))
            p("s_max_i32 s%d, s%d, 0" % (T + 5, T + 5))
            self.wait_flag(0, T + 5, 16)
        p("s_barrier")
        self.stamp(3)
        p("v_lshlrev_b32 v%d, 4, v1" % self.vKD)
        p("v_mov_b32 v%d, v%d" % (self.vVD, self.vKD))
        for i in range(1, 4):
            p("v_add_u32 v%d, %d, v%d" % (self.vKD + i, i * (PQK - 640), self.vKD))
            p("v_add_u32 v%d, %d, v%d" % (self.vVD + i, i * (10240 - 656), self.vKD))
        p("s_mul_i32 s%d, s%d, 640" % (T, sHP))
        p("s_lshl_b32 s%d, s%d, 2" % (T + 1, sRB2))
        p("s_add_u32 s%d, s%d, s%d" % (T + 1, T + 1, sWAVE))
        p("s_mul_i32 s%d, s%d, %d" % (T + 2, T + 1, 4 * PQK))
        p("s_add_u32 s%d, s%d, s%d" % (T + 2, T + 2, T))
        p("s_add_u32 s%d, s%d, %d" % (T + 2, T + 2, WS_QK))
        p("s_mul_i32 s%d, s%d, %d" % (T + 3, T + 1, 40960))
        p("s_add_u32 s%d, s%d, s%d" % (T + 3, T + 3, T))
        p("s_add_u32 s%d, s%d, %d" % (T + 3, T + 3, WS_V))
        p("s_mul_i32 s%d, s%d, %d" % (T + 6, sWAVE, 4 * 640))
        p("s_mul_i32 s%d, s%d, %d" % (T + 7, sWAVE, 4 * 656))
        p("s_mov_b32 exec_hi, 0xff")
        for b in range(3):
            back = 2 - b
            p("s_sub_u32 s%d, s%d, %d" % (T + 4, T + 2, back * 16 * PQK - 80 * 128))
            p("s_sub_u32 s%d, s%d, %d" % (T + 5, T + 3, back * 163840))
            if back:
                p("s_cmp_lt_u32 s%d, %d" % (sRB2, back))
                p("s_cselect_b32 s%d, 0x%x, s%d" % (T + 4, OOB, T + 4))
                p("s_cselect_b32 s%d, 0x%x, s%d" % (T + 5, OOB, T + 5))
            p("s_add_u32 m0, s%d, %d" % (T + 6, self.KB + b * 16 * 640))
            for i in range(4):
                p("buffer_load_dwordx4 v%d, %s, s%d offen offset:%d%s lds" %
                  (self.vKD + i, srd(sWS), T + 4, 640 * i, self.aux), tag="KV")
            p("s_add_u32 m0, s%d, %d" % (T + 7, self.VB + b * 16 * 656))
            for i in range(4):
                p("buffer_load_dwordx4 v%d, %s, s%d offen offset:%d%s lds" %
                  (self.vVD + i, srd(sWS), T + 5, 656 * i, self.aux), tag="KV")
        p("s_mov_b32 exec_hi, -1")
        p("v_lshrrev_b32 v2, 5, v1")
        p("v_and_b32 v3, 31, v1")
        p("v_lshrrev_b32 v4, 3, v3")
        p("v_and_b32 v5, 7, v1")
        p("v_lshlrev_b32 v5, 4, v5")
        p("s_mov_b32 s%d, %d" % (T + 4, PQK))
        p("v_mad_u32_u24 v6, v4, s%d, v5" % (T + 4))
        p("v_lshl_add_u32 v7, v2, 7, v6")
        p("v_lshl_add_u32 v6, v2, 3, v6")
        p("buffer_load_dwordx4 %s, v7, %s, s%d offen%s" % (vr(self.rQA, 4), srd(sWS), T + 2, self.aux))
        p("buffer_load_dwordx4 %s, v7, %s, s%d offen offset:384%s" % (vr(self.rQB, 4), srd(sWS), T + 2, self.aux))
        p("buffer_load_dwordx2 %s, v6, %s, s%d offen offset:256%s" % (vr(self.rQ2A, 2), srd(sWS), T + 2, self.aux))
        p("v_lshlrev_b32 v6, 2, v3")
        p("s_lshl_b32 s%d, s%d, 7" % (T + 4, T + 1))
        p("s_add_u32 s%d, s%d, %d" % (T + 4, T + 4, WS_G))
        p("buffer_load_dword v%d, v6, %s, s%d offen%s" % (self.vG2, srd(sWS), T + 4, self.aux))
        p("s_mov_b32 s%d, %d" % (T + 4, PHO))
        p("v_mad_u32_u24 v6, v4, s%d, v5" % (T + 4))
        p("v_lshl_add_u32 v%d, v2, 7, v6" % self.vQO)
        p("s_mul_i32 s%d, s%d, %d" % (sStB, T + 1, 4 * PHO))
        p("s_add_u32 s%d, s%d, s%d" % (sStB, sStB, T))
        p("s_add_u32 s%d, s%d, %d" % (sStB, sStB, WS_HO + 216 * 128))
        p("v_mul_u32_u24 v6, 640, v4")
        p("v_add3_u32 v6, v6, v5, s%d" % (T + 6))
        p("v_lshl_add_u32 v%d, v2, 7, v6" % self.vKA)
        p("v_lshl_add_u32 v%d, v2, 3, v6" % self.vK2)
        p("v_and_b32 v6, 3, v1")
        p("v_bfe_u32 v7, v1, 2, 1")
        p("v_lshl_add_u32 v7, v7, 3, v6")
        p("v_bfe_u32 v4, v1, 3, 1")
        p("v_lshl_add_u32 v7, v4, 2, v7")
        p("v_add_u32 v4, 24, v7")
        p("v_add_u32 v5, 16, v6")
        p("v_add_u32 v6, 20, v6")
        p("v_cmp_gt_u32 vcc, 16, v3")
        p("v_cndmask_b32 v7, v5, v7, vcc")
        p("v_cndmask_b32 v4, v6, v4, vcc")
        p("v_cmp_gt_u32 vcc, 24, v3")
        p("v_cndmask_b32 v7, 40, v7, vcc")
        p("v_cndmask_b32 v4, 40, v4, vcc")
        p("v_mul_u32_u24 v5, 656, v2")
        p("s_add_u32 s%d, s%d, %d" % (T + 7, T + 7, self.VB))
        p("v_add_u32 v5, s%d, v5" % (T + 7))
        p("v_lshl_add_u32 v%d, v7, 4, v5" % self.vVA)
        p("v_lshl_add_u32 v%d, v4, 4, v5" % self.vVB)
        p("v_lshrrev_b32 v4, 4, v1")
        p("v_add_u32 v4, s%d, v4" % sRB2)
        p("v_mov_b32 v5, 0x3f803f80")
        p("v_cmp_le_u32 vcc, 2, v4")
        p("v_cndmask_b32 v%d, 0, v5, vcc" % self.rE)
        for k in range(1, 4):
            p("v_mov_b32 v%d, v%d" % (self.rE + k, self.rE))
        p("v_mul_u32_u24 v4, 656, v1")
        p("s_mov_b32 exec_hi, 0xffff")
        p("ds_write_b128 v4, %s offset:%d" % (vr(self.rE, 4), self.VB + 640), tag="ones")
        p("s_mov_b32 exec_hi, -1")
        big = 2.0 ** 100
        p("v_lshlrev_b32 v4, 2, v2")
        p("v_sub_u32 v4, v3, v4")
        p("v_cvt_f32_i32 v4, v4")
        p("v_add_f32 v4, 0.5, v4")
        p("v_mul_f32 v4, %s, v4" % f32(big))
        for r in range(16):
            c = 8 * (r // 4) + r % 4
            p("v_add_f32 v5, %s, v4" % f32(-c * big))
            p("v_min_f32 v%d, 0, v5" % (self.rDiag + r))
            p("v_min_f32 v%d, 0, -v5" % (self.rFar + r))
        p("v_cmp_eq_u32 vcc, 0, v2")
        for k in range(2):
            p("v_cndmask_b32 v%d, v%d, 0, vcc" % (self.rQ2B + k, self.rQ2A + k))
            p("v_cndmask_b32 v%d, 0, v%d, vcc" % (self.rQ2A + k, self.rQ2A + k))
        p("s_waitcnt vmcnt(0) lgkmcnt(0)")
        p("s_barrier")
        self.stamp(4)
        self.p2_main()
        self.p2_epi()
        self.stamp(5)
        self.signal(2, sRB2)

    def rdK1(self, u):
        return "ds_read_b128 %s, v%d offset:%d" % (vr(self.rK1, 4), self.vKA, self.KB + (u // 2) * 2560 + 384 * (u % 2))

    def rdK2(self, i):
        return "ds_read_b64 %s, v%d offset:%d" % (vr(self.rK2, 2), self.vK2, self.KB + i * 2560 + 256)

    def rdV(self, u, t):
        return "ds_read_b128 %s, v%d offset:%d" % (vr(self.rV1 if t else self.rV0, 4), self.vVB if u % 2 else self.vVA,
                                                    (4 * (u // 2) + 2 * t) * 656)

    def qk1(self, u):
        i = u // 2
        c = vr(self.rFar, 16) if i == 0 else vr(self.rDiag, 16) if i == 8 else "0"
        return "v_mfma_f32_32x32x16_bf16 %s, %s, %s, %s" % (
            vr(self.rS + 16 * (u % 2), 16), vr(self.rK1, 4), vr(self.rQB if u % 2 else self.rQA, 4), c)

    def qk2(self, u):
        s = vr(self.rS + 16 * (u % 2), 16)
        return "v_mfma_f32_32x32x8_bf16 %s, %s, %s, %s" % (s, vr(self.rK2, 2), vr(self.rQ2B if u % 2 else self.rQ2A, 2), s)

    def pv(self, u, t):
        o = vr(self.rO + 16 * (u % 2), 16)
        return "v_mfma_f32_32x32x16_bf16 %s, %s, %s, %s" % (
            o, vr(self.rV1 if t else self.rV0, 4), vr(self.rP + 4 * t, 4), "0" if (u < 2 and t == 0) else o)

    def p2_main(self):
        p = self.p
        NU = 18
        ex = lambda u, r: "v_exp_f32 v%d, v%d" % (self.rE + r % 8, self.rS + 16 * (u % 2) + r)
        cv = lambda k: "v_cvt_pk_bf16_f32 v%d, v%d, v%d" % (self.rP + k, self.rE + (2 * k) % 8, self.rE + (2 * k + 1) % 8)
        p(self.rdK1(0))
        p(self.rdK2(0))
        p(self.rdV(0, 0))
        p(self.qk1(0))
        p(self.rdK1(1))
        p(self.qk2(0))
        for u in range(NU):
            nx = u + 1 < NU
            if nx:
                p(self.qk1(u + 1))
                if u + 2 < NU:
                    p(self.rdK1(u + 2))
            if u:
                p(cv(6)); p(cv(7))
            for r in range(0, 4):
                p(ex(u, r))
            if u:
                p(self.pv(u - 1, 1))
            p(self.rdV(u, 1))
            p(cv(0)); p(cv(1))
            for r in range(4, 8):
                p(ex(u, r))
            if nx:
                p(self.qk2(u + 1))
                if (u + 1) % 2 == 1 and u + 2 < NU:
                    p(self.rdK2((u + 2) // 2))
            p(cv(2)); p(cv(3))
            for r in range(8, 12):
                p(ex(u, r))
            p(self.pv(u, 0))
            if nx:
                p(self.rdV(u + 1, 0))
            p(cv(4)); p(cv(5))
            for r in range(12, 16):
                p(ex(u, r))
        p(cv(6)); p(cv(7))
        p(self.pv(NU - 1, 1))

    def p2_epi(self):
        p = self.p
        slow, back = self.lab("slow"), self.lab("norm")
        lA, lB = self.rO + 12, self.rO + 16 + 12
        p("v_max_f32 v2, v%d, v%d" % (lA, lB))
        p("v_min_f32 v3, v%d, v%d" % (lA, lB))
        p("v_mov_b32 v4, 0")
        for hd in range(2):
            for k in range(0, 12):
                p("v_fma_f32 v4, v%d, 0, v4" % (self.rO + 16 * hd + k))
        p("v_fma_f32 v4, v%d, 0, v4" % lA)
        p("v_fma_f32 v4, v%d, 0, v4" % lB)
        p("v_add_f32 v2, v2, v4")
        p("v_cmp_nge_f32 vcc, %s, v2" % f32(2.0 ** 60))
        p("s_mov_b64 s[%d:%d], vcc" % (sT, sT + 1))
        p("v_cmp_nle_f32 vcc, %s, v3" % f32(2.0 ** -60))
        p("s_or_b64 vcc, vcc, s[%d:%d]" % (sT, sT + 1))
        if self.force_slow:
            p("s_branch %s" % slow)
        else:
            p("s_cbranch_vccnz %s" % slow)
        p(back + ":")
        for hd in range(2):
            o = self.rO + 16 * hd
            p("v_rcp_f32 v2, v%d" % (o + 12))
            p("v_mul_f32 v2, v%d, v2" % self.vG2)
            for k in range(6):
                p("v_pk_mul_f32 %s, %s, v[2:3] op_sel_hi:[1,0]" % (vr(o + 2 * k, 2), vr(o + 2 * k, 2)))
            for k in range(4):
                p("v_cvt_pk_bf16_f32 v%d, v%d, v%d" % (self.rS + 4 * hd + k, o + 2 * k, o + 2 * k + 1))
            for k in range(2):
                p("v_cvt_pk_bf16_f32 v%d, v%d, v%d" % (self.rS + 8 + 2 * hd + k, o + 8 + 2 * k, o + 9 + 2 * k))
            p("buffer_store_dwordx4 %s, v%d, %s, s%d offen offset:%d%s" %
              (vr(self.rS + 4 * hd, 4), self.vQO, srd(sWS), sStB, 384 * hd, self.aux))
        p("s_mov_b32 exec_hi, 0")
        p("buffer_store_dwordx4 %s, v%d, %s, s%d offen offset:256%s" %
          (vr(self.rS + 8, 4), self.vQO, srd(sWS), sStB, self.aux))
        p("s_mov_b32 exec_hi, -1")
        self.p2_slow(slow, back)

    def p2_slow(self, slow, back):
        q = Prog()
        T = sT
        S, P = self.rS, self.rP
        aK1, aK2, aV = 4, 5, 6
        vM = 7
        q(slow + ":")
        q("s_nop 15")
        q("s_lshl_b32 s%d, s%d, 2" % (T, sRB2))
        q("s_add_u32 s%d, s%d, s%d" % (T, T, sWAVE))
        q("s_sub_u32 s%d, 8, s%d" % (T, T))
        q("s_max_i32 s%d, s%d, 0" % (T, T))
        for hd in range(2):
            O = self.rO + 16 * hd
            for ps in range(2):
                lp, nm, nm2 = self.lab("sl"), self.lab("nm"), self.lab("nm2")
                q("s_mov_b32 s%d, s%d" % (T + 1, T))
                q("s_mul_i32 s%d, s%d, 2560" % (T + 2, T))
                q("s_mul_i32 s%d, s%d, 2624" % (T + 3, T))
                q("v_add_u32 v%d, s%d, v%d" % (aK1, T + 2, self.vKA))
                q("v_add_u32 v%d, s%d, v%d" % (aK2, T + 2, self.vK2))
                q("v_add_u32 v%d, s%d, v%d" % (aV, T + 3, self.vVB if hd else self.vVA))
                if ps == 0:
                    q("v_mov_b32 v%d, 0xff800000" % vM)
                else:
                    for r in range(16):
                        q("v_mov_b32 v%d, 0" % (O + r))
                q(lp + ":")
                q("ds_read_b128 %s, v%d offset:%d" % (vr(self.rK1, 4), aK1, self.KB + 384 * hd))
                q("ds_read_b64 %s, v%d offset:%d" % (vr(self.rK2, 2), aK2, self.KB + 256))
                q("ds_read_b128 %s, v%d" % (vr(self.rV0, 4), aV))
                q("ds_read_b128 %s, v%d offset:%d" % (vr(self.rV1, 4), aV, 2 * 656))
                q("s_waitcnt lgkmcnt(0)")
                q("v_mfma_f32_32x32x16_bf16 %s, %s, %s, 0" % (vr(S, 16), vr(self.rK1, 4), vr(self.rQB if hd else self.rQA, 4)))
                q("v_mfma_f32_32x32x8_bf16 %s, %s, %s, %s" %
                  (vr(S, 16), vr(self.rK2, 2), vr(self.rQ2B if hd else self.rQ2A, 2), vr(S, 16)))
                q("s_nop 15")
                q("v_mov_b32 v2, 0xff800000")
                for which, reg, lab in ((0, self.rFar, nm), (8, self.rDiag, nm2)):
                    q("s_cmp_lg_u32 s%d, %d" % (T + 1, which))
                    q("s_cbranch_scc1 %s" % lab)
                    for r in range(16):
                        q("v_cmp_eq_f32 vcc, 0, v%d" % (reg + r))
                        q("v_cndmask_b32 v%d, v2, v%d, vcc" % (S + r, S + r))
                    q(lab + ":")
                if ps == 0:
                    for r in range(0, 16, 2):
                        q("v_max3_f32 v%d, v%d, v%d, v%d" % (vM, S + r, S + r + 1, vM))
                else:
                    for r in range(16):
                        q("v_sub_f32 v%d, v%d, v%d" % (S + r, S + r, vM))
                        q("v_exp_f32 v%d, v%d" % (S + r, S + r))
                    for k in range(8):
                        q("v_cvt_pk_bf16_f32 v%d, v%d, v%d" % (P + k, S + 2 * k, S + 2 * k + 1))
                    for t in range(2):
                        q("v_mfma_f32_32x32x16_bf16 %s, %s, %s, %s" %
                          (vr(O, 16), vr(self.rV1 if t else self.rV0, 4), vr(P + 4 * t, 4), vr(O, 16)))
                q("v_add_u32 v%d, 2560, v%d" % (aK1, aK1))
                q("v_add_u32 v%d, 2560, v%d" % (aK2, aK2))
                q("v_add_u32 v%d, 2624, v%d" % (aV, aV))
                q("s_add_u32 s%d, s%d, 1" % (T + 1, T + 1))
                q("s_cmp_lt_u32 s%d, 9" % (T + 1))
                q("s_cbranch_scc1 %s" % lp)
                if ps == 0:
                    q("v_mov_b32 v2, v%d" % vM)
                    q("v_permlane32_swap_b32 v2, v%d" % vM)
                    q("v_max_f32 v%d, v2, v%d" % (vM, vM))
        q("s_nop 15")
        q("s_branch %s" % back)
        self.tail.raw(q.finalize())

    NS3, RED = 12, 98304
    vD3, vT3, vA3, vRW, vRR, vO3 = 8, 12, 14, 18, 22, 24
    rW3 = 32
    rSum = 48
    acc3 = 160
    rAct = 0
    rWO = 128
    NA = 9

    def p3(self, done):
        p = self.p
        T = sT
        p("s_cmp_ge_u32 s%d, 30" % sJ)
        p("s_cbranch_scc1 %s" % done)
        p("s_mul_i32 s%d, s%d, 52" % (T, sJ))
        p("s_lshr_b32 s%d, s%d, 8" % (T, T))
        p("s_mul_i32 s%d, s%d, 5" % (T + 1, T))
        p("s_sub_u32 s%d, s%d, s%d" % (T + 1, sJ, T + 1))
        p("s_and_b32 s%d, s%d, 3" % (T + 2, sXCD))
        p("s_mul_i32 s%d, s%d, 6" % (T + 2, T + 2))
        p("s_add_u32 s%d, s%d, s%d" % (sMB, T + 2, T))
        p("s_lshr_b32 s%d, s%d, 2" % (T + 2, sXCD))
        p("s_mul_i32 s%d, s%d, 5" % (T + 2, T + 2))
        p("s_add_u32 s%d, s%d, s%d" % (sNB, T + 2, T + 1))
        sW2o, sWOo, sA0, sA1, sA2, sL3, sRlo, sRhi = 71, 72, 73, 74, 75, 76, 77, 78
        p("v_lshrrev_b32 v2, 3, v1")
        p("v_bfe_u32 v3, v1, 4, 1")
        p("v_lshlrev_b32 v3, 2, v3")
        p("v_and_b32 v4, 7, v1")
        p("v_xor_b32 v3, v3, v4")
        p("v_mul_u32_u24 v5, 1280, v2")
        p("v_lshl_add_u32 v%d, v3, 4, v5" % self.vD3)
        p("v_add_u32 v%d, %d, v%d" % (self.vD3 + 1, 8 * 1280 - 1024, self.vD3))
        p("s_lshl_b32 s%d, s%d, 7" % (T, sNB))
        p("s_mul_i32 s%d, s%d, %d" % (sW2o, sWAVE, 27 * 16 * 1280))
        p("s_add_u32 s%d, s%d, s%d" % (sW2o, sW2o, T))
        p("s_mul_i32 s%d, s%d, %d" % (sWOo, sWAVE, 10 * 16 * 1280))
        p("s_add_u32 s%d, s%d, s%d" % (sWOo, sWOo, T))
        p("s_mul_i32 s%d, s%d, %d" % (sL3, sWAVE, self.NS3 * 2048))
        p("s_barrier")

        def dma(k):
            rs, off = (sW2, sW2o) if k < 27 else (sWO, sWOo)
            return [[Ins("s_add_u32 m0, s%d, %d" % (sL3, (k % self.NS3) * 2048)),
                     Ins("buffer_load_dwordx4 v%d, %s, s%d offen lds" % (self.vD3, srd(rs), off), tag="w%d" % k)],
                    [Ins("buffer_load_dwordx4 v%d, %s, s%d offen offset:1024 lds" % (self.vD3 + 1, srd(rs), off), tag="w%d" % k),
                     Ins("s_add_u32 s%d, s%d, %d" % (off, off, 16 * 1280))]]

        for k in range(self.NS3):
            p.add(dma(k))
        p("s_mul_i32 s%d, s%d, 11" % (T + 1, sMB))
        p("s_add_u32 s%d, s%d, s%d" % (T + 2, T + 1, sWAVE))
        p("s_mul_i32 s%d, s%d, %d" % (T + 2, T + 2, 8 * 1280))
        p("s_add_u32 s%d, s%d, s%d" % (T + 2, T + 2, T))
        p("v_lshl_add_u32 v5, v4, 4, v5")
        p("v_add_u32 v%d, s%d, v5" % (self.vO3, T + 2))
        p("v_add_u32 v%d, %d, v%d" % (self.vO3 + 1, 32 * 1280, self.vO3))
        p("s_cmp_eq_u32 s%d, 3" % sWAVE)
        self.csel(T + 2, OOB, 64 * 1280)
        p("v_add_u32 v%d, s%d, v%d" % (self.vO3 + 2, T + 2, self.vO3))
        p("v_lshlrev_b32 v5, 1, v4")
        p("v_xor_b32 v5, v5, v2")
        p("v_lshlrev_b32 v5, 4, v5")
        p("v_lshl_add_u32 v5, v2, 8, v5")
        p("s_lshl_b32 s%d, s%d, 11" % (T + 2, sWAVE))
        p("s_add_u32 s%d, s%d, %d" % (T + 2, T + 2, self.RED))
        p("v_add_u32 v%d, s%d, v5" % (self.vRR, T + 2))
        p("v_xor_b32 v%d, 16, v%d" % (self.vRR + 1, self.vRR))
        p("v_lshrrev_b32 v2, 5, v1")
        p("v_bfe_u32 v3, v1, 2, 2")
        p("v_lshl_add_u32 v5, v2, 3, v3")
        p("v_lshlrev_b32 v5, 7, v5")
        p("v_bfe_u32 v6, v1, 3, 1")
        p("v_lshl_add_u32 v5, v6, 6, v5")
        p("v_bfe_u32 v6, v1, 4, 1")
        p("v_lshl_add_u32 v5, v6, 5, v5")
        p("v_and_b32 v6, 1, v1")
        p("v_lshl_add_u32 v5, v6, 4, v5")
        p("v_bfe_u32 v6, v1, 1, 1")
        p("v_lshl_add_u32 v5, v6, 3, v5")
        p("v_add_u32 v%d, s%d, v5" % (self.vT3, sL3))
        p("v_xor_b32 v%d, 64, v%d" % (self.vT3 + 1, self.vT3))
        p("v_and_b32 v3, 31, v1")
        p("v_lshlrev_b32 v5, 1, v2")
        p("v_xor_b32 v5, v5, v4")
        p("v_lshlrev_b32 v5, 4, v5")
        p("v_lshl_add_u32 v5, v3, 8, v5")
        p("s_lshl_b32 s%d, s%d, 13" % (T + 2, sWAVE))
        p("s_add_u32 s%d, s%d, %d" % (T + 2, T + 2, self.RED))
        p("v_add_u32 v%d, s%d, v5" % (self.vRW, T + 2))
        for k, x in ((1, 16), (2, 64), (3, 80)):
            p("v_xor_b32 v%d, %d, v%d" % (self.vRW + k, x, self.vRW))
        p("v_lshrrev_b32 v5, 3, v3")
        p("v_lshlrev_b32 v6, 4, v4")
        p("v_lshl_add_u32 v6, v2, 7, v6")
        p("s_mov_b32 s%d, %d" % (T + 2, PHO))
        p("v_mad_u32_u24 v6, v5, s%d, v6" % (T + 2))
        p("s_mul_i32 s%d, s%d, %d" % (T + 2, T + 1, PHO))
        p("s_add_u32 s%d, s%d, %d" % (T + 2, T + 2, WS_HO))
        p("v_add_u32 v%d, s%d, v6" % (self.vA3, T + 2))
        p("v_add_u32 v%d, %d, v%d" % (self.vA3 + 1, 4 * PHO, self.vA3))
        p("v_add_u32 v%d, %d, v%d" % (self.vA3 + 2, 8 * PHO, self.vA3))
        p("v_mov_b32 v6, 0x%x" % OOB)
        p("v_cmp_gt_u32 vcc, 3, v5")
        p("v_cndmask_b32 v%d, v6, v%d, vcc" % (self.vA3 + 2, self.vA3 + 2))
        p("s_mul_i32 s%d, s%d, %d" % (sA0, sWAVE, 27 * 256))
        p("s_add_u32 s%d, s%d, 4096" % (sA1, sA0))
        p("s_mul_i32 s%d, s%d, %d" % (sA2, sWAVE, 10 * 256))
        p("s_add_u32 s%d, s%d, %d" % (sA2, sA2, 216 * 128))
        p("s_lshr_b32 s%d, s%d, 4" % (sRlo, T + 1))
        p("s_add_u32 s%d, s%d, 10" % (sRhi, T + 1))
        p("s_lshr_b32 s%d, s%d, 4" % (sRhi, sRhi))
        p("s_min_u32 s%d, s%d, 15" % (sRhi, sRhi))
        self.wait_flag(1, sRlo, 15)
        self.wait_flag(1, sRhi, 15)
        self.stamp(6)

        frs = [(k, rt) for k in range(27) for rt in range(3)] + [(27 + k, rt) for rt in range(3) for k in range(10)]
        NR = 3 * self.NA

        def act(f):
            k, rt = frs[f]
            so, im = (sA0, 256 * k) if k < 16 else (sA1, 256 * (k - 16)) if k < 27 else (sA2, 256 * (k - 27))
            return Ins("buffer_load_dwordx4 %s, v%d, %s, s%d offen offset:%d%s" %
                       (ar(self.rAct + 4 * (f % NR), 4), self.vA3 + rt, srd(sWS), so, im, self.aux))

        def wreg(k, ct, n=4, o=0):
            return vr(self.rW3 + 8 * (k % 2) + 4 * ct + o, n) if k < 27 else ar(self.rWO + 8 * (k - 27) + 4 * ct + o, n)

        def trs(k):
            return [Ins("ds_read_b64_tr_b16 %s, v%d offset:%d" %
                        (wreg(k, ct, 2, 2 * i), self.vT3 + ct, (k % self.NS3) * 2048 + 512 * i), tag="t%d" % k)
                    for ct in range(2) for i in range(2)]

        for f in range(NR):
            p.add(act(f))
        p.wait_tag("w0")
        p.add(trs(0))
        nf = len(frs)
        side = {}

        def put(n, x):
            side.setdefault(n, []).append(x)

        from asmlib import pseudo
        nxt = self.NS3
        for k in range(1, 37):
            n = 6 * (k - 1) if k < 27 else 6 * 26 + 2 * (k - 27)
            put(n, pseudo("wait_tag", {"w%d" % k}))
            t = trs(k)
            put(n, t[:2])
            put(n + 1, t[2:])
            if nxt < 37:
                d = dma(nxt)
                put(n + 2, [pseudo("wait_ldstag", {"t%d" % (k - 1)}), d[0]])
                put(n + 3, d[1])
                nxt += 1
        red_w, red_r = {}, {}
        for rt in range(3):
            buf = (rt % 2) * 32768
            w = []
            for ct in range(2):
                for t in range(2):
                    for u in range(2):
                        a = self.acc3 + 32 * rt + 16 * ct + 8 * t + 4 * u
                        w.append(Ins("ds_write_b128 v%d, %s offset:%d" % (self.vRW + 2 * t + u, vr(a, 4), buf + 128 * ct), tag="rw"))
            r = []
            for src in range(4):
                for u in range(2):
                    r.append(Ins("ds_read_b128 %s, v%d offset:%d" % (vr(self.rSum + 8 * src + 4 * u, 4), self.vRR + u, buf + 8192 * src)))
            f = []
            for a, b in ((0, 8), (16, 24), (0, 16)):
                for k in range(4):
                    f.append(Ins("v_pk_add_f32 %s, %s, %s" % (vr(self.rSum + a + 2 * k, 2), vr(self.rSum + a + 2 * k, 2), vr(self.rSum + b + 2 * k, 2))))
            for k in range(4):
                f.append(Ins("v_cvt_pk_bf16_f32 v%d, v%d, v%d" % (28 + k, self.rSum + 2 * k, self.rSum + 2 * k + 1)))
            f.append(Ins("buffer_store_dwordx4 v[28:31], v%d, %s, 0 offen" % (self.vO3 + rt, srd(sOUT))))
            red_w[rt], red_r[rt] = w, (r, f)
        for rt in range(2):
            n0 = 162 + 20 * (rt + 1)
            for k, x in enumerate(red_w[rt]):
                put(n0 + 2 + k, x)
            put(n0 + 11, [pseudo("wait_ldstag", {"rw"}), Ins("s_barrier")])
            for k, x in enumerate(red_r[rt][0]):
                put(n0 + 11 + k // 2, x)
            for k, x in enumerate(red_r[rt][1]):
                put(min(n0 + 16 + k // 4, n0 + 19), x)
        for f in range(nf):
            k, rt = frs[f]
            for ct in range(2):
                n = 2 * f + ct
                acc = vr(self.acc3 + 32 * rt + 16 * ct, 16)
                p("v_mfma_f32_32x32x16_bf16 %s, %s, %s, %s" %
                  (acc, wreg(k, ct), ar(self.rAct + 4 * (f % NR), 4), "0" if k == 0 else acc))
                for x in side.get(n, []):
                    p.add(x)
                if ct == 1 and f + NR < nf:
                    if f + NR == 81:
                        self.stamp(7)
                        self.wait_flag(2, sRlo, 16)
                        self.wait_flag(2, sRhi, 16)
                        self.stamp(8)
                    p.add(act(f + NR))
        self.stamp(9)
        p.add(red_w[2])
        p.wait_lds("rw")
        p("s_barrier")
        p.add(red_r[2][0])
        p.add(red_r[2][1])
        self.stamp(10)

    def kernel(self, name, body):
        self.p, self.tail = Prog(), Prog()
        done = self.lab("done")
        body(done)
        txt = ".globl %s\n.p2align 8\n.type %s,@function\n%s:\n" % (name, name, name)
        txt += self.p.finalize() + done + ":\n    s_endpgm\n" + self.tail.finalize()
        return txt

    @staticmethod
    def desc(name):
        return """.section .rodata,"a"
.p2align 6
.amdhsa_kernel %s
  .amdhsa_next_free_vgpr 512
  .amdhsa_next_free_sgpr 102
  .amdhsa_accum_offset 256
  .amdhsa_group_segment_fixed_size 0
  .amdhsa_kernarg_size 80
  .amdhsa_user_sgpr_count 2
  .amdhsa_user_sgpr_kernarg_segment_ptr 1
  .amdhsa_system_sgpr_workgroup_id_x 1
  .amdhsa_float_denorm_mode_32 3
.end_amdhsa_kernel
""" % name

    def build(self):
        head = '.amdgcn_target "amdgcn-amd-amdhsa--gfx950"\n.text\n'
        if self.split:
            def k0(done):
                self.prologue(256, done)
                self.p("s_cmp_lt_u32 s%d, 30" % sJ)
                self.p("s_cbranch_scc1 %s" % done)
                self.gate()

            def k1(done):
                self.prologue(240, done)
                self.p1_setup()
                self.p1_main()

            def k2(done):
                self.prologue(256, done)
                self.p2()

            def k3(done):
                self.prologue(240, done)
                self.p3(done)
            ks = [("k0_kernel", k0, 256), ("k1_kernel", k1, 240), ("k2_kernel", k2, 256), ("k3_kernel", k3, 240)]
            top = "".join("; @launch kernel=%s grid=(%d,1,1) block=(256,1,1) lds=163840\n" % (n, g) for n, _, g in ks)
            return top + head + "".join(self.kernel(n, b) for n, b, _ in ks) + "".join(self.desc(n) for n, _, _ in ks)

        def body(done):
            p = self.p
            self.prologue(256, done)
            lg, l2, fin = self.lab("gate"), self.lab("p2"), self.lab("fin")
            p("s_cmp_ge_u32 s%d, 30" % sJ)
            p("s_cbranch_scc1 %s" % lg)
            self.p1_setup()
            self.p1_main()
            p.drain()
            p(l2 + ":")
            self.p2()
            self.p3(fin)
            p(fin + ":")
            self.flush_stamps(11)
            keep = self.p
            self.p = Prog()
            self.p(lg + ":")
            self.gate()
            self.p.drain()
            self.p("s_branch %s" % l2)
            self.tail.raw(self.p.finalize())
            self.p = keep
        name = NAME + "_kernel"
        top = "; @launch grid=(256,1,1) block=(256,1,1) lds=163840\n"
        return top + head + self.kernel(name, body) + self.desc(name)


if __name__ == "__main__":
    import argparse
    ap = argparse.ArgumentParser()
    ap.add_argument("-o", default="k.s")
    ap.add_argument("--split", action="store_true")
    ap.add_argument("--stamps", action="store_true")
    ap.add_argument("--slow", action="store_true")
    a = ap.parse_args()
    open(a.o, "w").write(Gen(split=a.split, stamps=a.stamps, force_slow=a.slow).build())
```

```python
import sys, struct, math
from asmlib import Prog, Ins

NAME = "gated_mix__sliding_block__dense_activation_relu__prompt"

PQK = 161 * 128
PHO = 297 * 128
WS_FLAG = 0
WS_G = 16384
WS_TS = 32768
WS_QK = 131072
WS_V = WS_QK + 256 * PQK
WS_HO = WS_V + 256 * 10240
WS_END = WS_HO + 256 * PHO
OOB = 0x80000000
QSCALE = math.log2(math.e) / math.sqrt(20.0)


def f32(x):
    return "0x%08x" % struct.unpack("<I", struct.pack("<f", x))[0]


sX, sWA, sWB, sWS, sW2, sWO, sOUT, sDBG = 8, 12, 16, 20, 24, 28, 32, 36
sGATE = 40
sXCD, sJ, sWAVE = 3, 4, 5
sRB, sCB = 6, 7
sT = 60
sW4K = 70
sOffWA, sOffWB, sOffX = 71, 72, 73
sStA0, sStA1, sStB, sScale = 74, 75, 76, 78
sRB2, sHP = 80, 81
sMB, sNB = 82, 83
sTS = 84
sTSB = 86


def srd(r):
    return "s[%d:%d]" % (r, r + 3)


def vr(a, n=1):
    return "v%d" % a if n == 1 else "v[%d:%d]" % (a, a + n - 1)


def ar(a, n=1):
    return "a%d" % a if n == 1 else "a[%d:%d]" % (a, a + n - 1)


class Gen:
    def __init__(self, split=False, stamps=False, force_slow=False, diag=None):
        self.diag = diag
        self.split = split
        self.stamps = stamps
        self.force_slow = force_slow
        self.p = Prog()
        self.tail = Prog()
        self.uid = 0
        self.aux = "" if split else " sc1"

    def lab(self, s):
        self.uid += 1
        return "L_%s_%d" % (s, self.uid)

    def csel(self, d, a, b):
        self.p("s_mov_b32 s%d, 0x%x" % (d, b))
        self.p("s_cmov_b32 s%d, 0x%x" % (d, a))

    def stamp(self, k):
        if self.diag:
            if k in self.diag[:2]:
                self.p.raw("    %s s[%d:%d]\n    s_waitcnt lgkmcnt(0)\n    s_mov_b32 s%d, s%d" %
                           ("s_memrealtime" if self.diag[2] else "s_memtime", sTS, sTS + 1, 88 + k, sTS))
            return
        if not self.stamps:
            return
        self.p.raw("    s_memtime s[%d:%d]\n    s_waitcnt lgkmcnt(0)\n    s_mov_b32 s%d, s%d" % (sTS, sTS + 1, 88 + k, sTS))

    def flush_stamps(self, n):
        if self.diag:
            a, b, real, wg = self.diag
            e = self.lab("dg")
            self.p.raw("""    s_cmp_lg_u32 s2, %d
    s_cbranch_scc1 %s
    s_sub_u32 s60, s%d, s%d
    %s
    s_min_u32 s60, s60, 100000
    s_memrealtime s[62:63]
    s_waitcnt lgkmcnt(0)
%s_l:
    s_memrealtime s[64:65]
    s_waitcnt lgkmcnt(0)
    s_sub_u32 s64, s64, s62
    s_cmp_lt_u32 s64, s60
    s_cbranch_scc1 %s_l
%s:""" % (wg, e, 88 + b, 88 + a, "s_lshl_b32 s60, s60, 2" if real else "s_lshr_b32 s60, s60, 2", e, e, e))
            return
        if not self.stamps:
            return
        p = self.p
        p.drain()
        p("s_lshl_b32 s%d, s2, 2" % sT)
        p("s_add_u32 s%d, s%d, s%d" % (sT, sT, sWAVE))
        p("s_lshl_b32 s%d, s%d, 6" % (sT, sT))
        p("s_add_u32 s%d, s%d, %d" % (sT, sT, WS_TS))
        p("v_mov_b32 v2, s%d" % sT)
        p("s_mov_b64 exec, 1")
        for k in range(n):
            p("v_mov_b32 v3, s%d" % (88 + k))
            p("buffer_store_dword v3, v2, %s, 0 offen offset:%d" % (srd(sWS), 4 * k))
        p("s_getreg_b32 s%d, hwreg(HW_REG_XCC_ID)" % sT)
        p("v_mov_b32 v3, s%d" % sT)
        p("buffer_store_dword v3, v2, %s, 0 offen offset:60" % srd(sWS))
        p("s_mov_b64 exec, -1")

    def prologue(self, nwg, done):
        p = self.p
        p.reset()
        p("s_cmp_ge_u32 s2, %d" % nwg)
        p("s_cbranch_scc1 %s" % done)
        p("s_load_dwordx4 s[44:47], s[0:1], 0")
        p("s_load_dwordx2 s[48:49], s[0:1], 16")
        p("s_load_dwordx4 s[52:55], s[0:1], 32")
        p("s_load_dwordx8 s[60:67], s[0:1], 48")
        p("v_and_b32 v1, 63, v0")
        p("v_lshrrev_b32 v2, 6, v0")
        p("s_and_b32 s%d, s2, 7" % sXCD)
        p("v_readfirstlane_b32 s%d, v2" % sWAVE)
        p("s_lshr_b32 s%d, s2, 3" % sJ)
        p("s_waitcnt lgkmcnt(0)")
        for r, b, n in ((sX, 44, 2048 * 1280), (sWA, 46, 640 * 3840), (sWB, 52, 640 * 3456), (sWS, 66, WS_END),
                        (sW2, 54, 1728 * 1280), (sWO, 48, 640 * 1280), (sOUT, 62, 2048 * 1280), (sDBG, 64, 256),
                        (sGATE, 60, 1280)):
            p("s_mov_b32 s%d, s%d" % (r, b))
            p("s_mov_b32 s%d, s%d" % (r + 1, b + 1))
            p("s_mov_b32 s%d, %d" % (r + 2, n))
            p("s_mov_b32 s%d, 0x20000" % (r + 3))
        p("s_lshl_b32 s%d, s%d, 12" % (sW4K, sWAVE))
        self.stamp(0)

    def signal(self, phase, s_rb, first=False):
        if self.split:
            return
        p = self.p
        p("s_waitcnt vmcnt(0)")
        p("s_barrier")
        skip = self.lab("sig")
        p("s_cmp_lg_u32 s%d, 0" % sWAVE)
        p("s_cbranch_scc1 %s" % skip)
        p("s_mov_b64 exec, 1")
        if first:
            self.spin(srd(sDBG), None, 0, 1)
        p("s_lshl_b32 s%d, s%d, 8" % (sT, s_rb))
        p("v_mov_b32 v2, s%d" % sT)
        p("v_mov_b32 v3, 1")
        p("s_mov_b32 s%d, %d" % (sT, WS_FLAG + phase * 4096))
        p("buffer_atomic_add v3, v2, %s, s%d offen sc1" % (srd(sWS), sT))
        p("s_mov_b64 exec, -1")
        p(skip + ":")
        if first:
            p("s_barrier")

    def spin(self, srd_s, s_idx, base, target):
        p = self.p
        lp, ok = self.lab("spin"), self.lab("ok")
        if s_idx is None:
            p("v_mov_b32 v2, %d" % base)
        else:
            p("s_lshl_b32 s%d, s%d, 8" % (sT, s_idx))
            p("s_add_u32 s%d, s%d, %d" % (sT, sT, base))
            p("v_mov_b32 v2, s%d" % sT)
        p("s_mov_b32 s%d, 200000" % (sT + 1))
        p(lp + ":")
        p("buffer_load_dword v3, v2, %s, 0 offen sc1" % srd_s)
        p("s_waitcnt vmcnt(0)")
        p("v_readfirstlane_b32 s%d, v3" % (sT + 2))
        p("s_sub_u32 s%d, s%d, 1" % (sT + 1, sT + 1))
        p("s_cbranch_scc1 %s" % ok)
        p("s_cmp_ge_u32 s%d, %d" % (sT + 2, target))
        p("s_cbranch_scc1 %s" % ok)
        p("s_sleep 2")
        p("s_branch %s" % lp)
        p(ok + ":")

    def wait_flag(self, phase, s_idx, target):
        if self.split:
            return
        self.spin(srd(sWS), s_idx, WS_FLAG + phase * 4096, target)

    def gate(self):
        p = self.p
        p("s_lshl_b32 s%d, s%d, 1" % (sRB, sXCD))
        p("s_add_u32 s%d, s%d, s%d" % (sRB, sRB, sJ))
        p("s_sub_u32 s%d, s%d, 30" % (sRB, sRB))
        if not self.split:
            skip = self.lab("init")
            p("s_cmp_lg_u32 s2, 240")
            p("s_cbranch_scc1 %s" % skip)
            p("s_cmp_lg_u32 s%d, 0" % sWAVE)
            p("s_cbranch_scc1 %s" % skip)
            p("v_lshlrev_b32 v2, 8, v1")
            p("v_mov_b32 v3, 0")
            p("buffer_store_dword v3, v2, %s, 0 offen sc1" % srd(sWS))
            p("s_waitcnt vmcnt(0)")
            p("v_mov_b32 v4, 1")
            p("s_mov_b64 exec, 1")
            p("buffer_store_dword v4, v3, %s, 0 offen sc1" % srd(sDBG))
            p("s_mov_b64 exec, -1")
            p(skip + ":")
        p("v_and_b32 v4, 15, v1")
        p("v_lshrrev_b32 v5, 4, v1")
        p("v_lshlrev_b32 v6, 4, v4")
        p("v_mul_u32_u24 v7, 1280, v5")
        p("v_add_u32 v7, v7, v6")
        p("s_lshl_b32 s%d, s%d, 2" % (sT, sRB))
        p("s_add_u32 s%d, s%d, s%d" % (sT, sT, sWAVE))
        p("s_mul_i32 s%d, s%d, %d" % (sT + 1, sT, 32 * 1280))
        for i in range(5):
            p("buffer_load_dwordx4 %s, v6, %s, 0 offen offset:%d" % (vr(16 + 4 * i, 4), srd(sGATE), 256 * i))
        for ps in range(8):
            for i in range(5):
                p("buffer_load_dwordx4 %s, v7, %s, s%d offen offset:%d" %
                  (vr(40 + 20 * ps + 4 * i, 4), srd(sX), sT + 1, 256 * i))
            p("s_add_u32 s%d, s%d, %d" % (sT + 1, sT + 1, 4 * 1280))
        p("v_mov_b32 v9, 0")
        for ps in range(8):
            for k in range(20):
                x, g = 40 + 20 * ps + k, 16 + k
                p("v_lshlrev_b32 v12, 16, v%d" % x)
                p("v_lshlrev_b32 v13, 16, v%d" % g)
                p("v_and_b32 v14, 0xffff0000, v%d" % x)
                p("v_and_b32 v15, 0xffff0000, v%d" % g)
                if k == 0:
                    p("v_mul_f32 v10, v12, v13")
                    p("v_mul_f32 v11, v14, v15")
                else:
                    p("v_fmac_f32 v10, v12, v13")
                    p("v_fmac_f32 v11, v14, v15")
            p("v_add_f32 v10, v10, v11")
            for sh in (8, 4, 2, 1):
                p("v_add_f32_dpp v10, v10, v10 row_ror:%d row_mask:0xf bank_mask:0xf" % sh)
            p("v_cmp_eq_u32 vcc, %d, v4" % ps)
            p("v_cndmask_b32 v9, v9, v10, vcc")
        p("v_mul_f32 v9, %s, v9" % f32(-math.log2(math.e)))
        p("v_exp_f32 v9, v9")
        p("v_add_f32 v9, 1.0, v9")
        p("v_rcp_f32 v9, v9")
        p("v_lshl_add_u32 v8, v4, 2, v5")
        p("v_lshlrev_b32 v8, 2, v8")
        p("v_mov_b32 v10, 0x%x" % OOB)
        p("v_cmp_gt_u32 vcc, 8, v4")
        p("v_cndmask_b32 v8, v10, v8, vcc")
        p("s_lshl_b32 s%d, s%d, 7" % (sT, sT))
        p("s_add_u32 s%d, s%d, %d" % (sT, sT, WS_G))
        p("buffer_store_dword v9, v8, %s, s%d offen%s" % (srd(sWS), sT, self.aux))
        self.signal(0, sRB, first=True)

    NW, NX, XB = 5, 4, 81920
    vWA, vWB, vX, vTR, vTR2, vXR = 8, 12, 16, 20, 24, 28
    vStA, vStB, vStB2, vG = 32, 33, 34, 36
    vPk = 40
    vFR = 96
    accA, accB = 128, 192

    def p1_setup(self):
        p = self.p
        T = sT
        p("s_lshr_b32 s%d, s%d, 1" % (T, sXCD))
        p("s_mul_i32 s%d, s%d, 30" % (T, T))
        p("s_add_u32 s%d, s%d, s%d" % (T, T, sJ))
        p("s_lshr_b32 s%d, s%d, 3" % (sCB, T))
        p("s_and_b32 s%d, s%d, 7" % (T, T))
        p("s_and_b32 s%d, s%d, 1" % (T + 1, sXCD))
        p("s_lshl_b32 s%d, s%d, 3" % (T + 1, T + 1))
        p("s_add_u32 s%d, s%d, s%d" % (sRB, T, T + 1))
        p("v_lshrrev_b32 v2, 4, v1")
        p("v_lshlrev_b32 v3, 2, v2")
        p("v_and_b32 v4, 15, v1")
        p("v_xor_b32 v4, v4, v3")
        p("s_lshl_b32 s%d, s%d, 4" % (T, sWAVE))
        p("v_add_u32 v5, s%d, v2" % T)
        p("v_mul_u32_u24 v6, 3840, v5")
        p("v_lshl_add_u32 v%d, v4, 4, v6" % self.vWA)
        for i in range(1, 4):
            p("v_add_u32 v%d, %d, v%d" % (self.vWA + i, i * (4 * 3840 - 1024), self.vWA))
        p("v_lshrrev_b32 v6, 3, v1")
        p("v_mul_u32_u24 v6, 1280, v6")
        p("v_and_b32 v7, 7, v1")
        p("v_xor_b32 v7, v7, v2")
        p("v_lshl_add_u32 v%d, v7, 4, v6" % self.vX)
        p("v_xor_b32 v%d, 64, v%d" % (self.vX + 1, self.vX))
        p("v_add_u32 v%d, %d, v%d" % (self.vX + 2, 2 * (8 * 1280 - 1024), self.vX))
        p("v_add_u32 v%d, %d, v%d" % (self.vX + 3, 3 * (8 * 1280 - 1024), self.vX + 1))
        p("v_add_u32 v%d, %d, v%d" % (self.vX + 1, 1 * (8 * 1280 - 1024), self.vX + 1))
        p("s_lshl_b32 s%d, s%d, 8" % (sOffWA, sCB))
        p("s_lshl_b32 s%d, s%d, 2" % (T + 2, sRB))
        p("s_add_u32 s%d, s%d, s%d" % (T + 2, T + 2, sWAVE))
        p("s_mul_i32 s%d, s%d, %d" % (sOffX, T + 2, 32 * 1280))
        self.issued = set()
        for s in range(4):
            p.add(self.dma_w(s))
            p.add(self.dma_x(s))
        p.add(self.dma_w(4))
        p("v_mul_u32_u24 v6, 3456, v5")
        p("v_lshl_add_u32 v%d, v4, 4, v6" % self.vWB)
        p("s_cmp_ge_u32 s%d, 12" % sCB)
        p("s_cselect_b32 s%d, 8, 16" % T)
        p("s_cselect_b32 s%d, 7, 8" % (T + 1))
        p("s_cselect_b32 s%d, 1536, 0" % (T + 3))
        p("s_cselect_b32 s%d, 0x%x, 0" % (T + 4, OOB))
        p("s_lshl_b32 s%d, s%d, s%d" % (sOffWB, sCB, T + 1))
        p("s_add_u32 s%d, s%d, s%d" % (sOffWB, sOffWB, T + 3))
        p("v_mov_b32 v7, 0x%x" % OOB)
        p("v_cmp_gt_u32 vcc, s%d, v4" % T)
        p("v_cndmask_b32 v%d, v7, v%d, vcc" % (self.vWB, self.vWB))
        for i in range(1, 4):
            p("v_add_u32 v%d, %d, v%d" % (self.vWB + i, i * (4 * 3456 - 1024), self.vWB))
        p("v_lshrrev_b32 v2, 5, v1")
        p("v_bfe_u32 v3, v1, 2, 2")
        p("v_lshl_add_u32 v4, v2, 3, v3")
        p("v_lshlrev_b32 v4, 8, v4")
        p("v_lshl_add_u32 v4, v3, 6, v4")
        p("v_bfe_u32 v5, v1, 4, 1")
        p("v_lshl_add_u32 v4, v5, 5, v4")
        p("v_and_b32 v5, 1, v1")
        p("v_lshl_add_u32 v4, v5, 4, v4")
        p("v_bfe_u32 v5, v1, 1, 1")
        p("v_lshl_add_u32 v%d, v5, 3, v4" % self.vTR)
        for ct in range(1, 4):
            p("v_xor_b32 v%d, %d, v%d" % (self.vTR + ct, ct * 64, self.vTR))
        for ct in range(4):
            p("v_add_u32 v%d, 0x10000, v%d" % (self.vTR2 + ct, self.vTR + ct))
        p("v_and_b32 v3, 31, v1")
        p("v_bfe_u32 v4, v1, 1, 3")
        p("v_xor_b32 v4, v4, v2")
        p("v_lshlrev_b32 v5, 7, v3")
        p("v_lshl_add_u32 v5, v4, 4, v5")
        p("s_add_u32 s%d, s%d, %d" % (T, sW4K, self.XB))
        p("v_add_u32 v%d, s%d, v5" % (self.vXR, T))
        for ks in range(1, 4):
            p("v_xor_b32 v%d, %d, v%d" % (self.vXR + ks, ks * 32, self.vXR))
        p("v_lshrrev_b32 v4, 3, v3")
        p("v_and_b32 v5, 7, v1")
        p("v_lshlrev_b32 v5, 4, v5")
        p("v_lshl_add_u32 v5, v2, 7, v5")
        p("s_mov_b32 s%d, %d" % (T, PHO))
        p("v_mad_u32_u24 v%d, v4, s%d, v5" % (self.vStB, T))
        p("v_or_b32 v%d, s%d, v%d" % (self.vStB2, T + 4, self.vStB))
        p("s_mov_b32 s%d, %d" % (T, PQK))
        p("v_mad_u32_u24 v%d, v4, s%d, v5" % (self.vStA, T))
        p("v_and_b32 v4, 19, v1")
        p("v_bfe_u32 v5, v1, 2, 1")
        p("v_lshl_add_u32 v4, v5, 3, v4")
        p("v_bfe_u32 v5, v1, 3, 1")
        p("v_lshl_add_u32 v4, v5, 2, v4")
        p("v_mul_u32_u24 v5, 10240, v2")
        p("v_lshl_add_u32 v4, v4, 4, v5")
        p("s_cmp_ge_u32 s%d, 10" % sCB)
        p("s_cselect_b64 vcc, -1, 0")
        p("v_cndmask_b32 v%d, v%d, v4, vcc" % (self.vStA, self.vStA))
        self.csel(T, 40960, 4 * PQK)
        self.csel(T + 1, WS_V - 10 * 2048, WS_QK)
        self.csel(T + 3, 20480, 256)
        p("s_mul_i32 s%d, s%d, s%d" % (sStA0, T + 2, T))
        p("s_add_u32 s%d, s%d, s%d" % (sStA0, sStA0, T + 1))
        p("s_lshl_b32 s%d, s%d, 11" % (T, sCB))
        p("s_add_u32 s%d, s%d, s%d" % (sStA0, sStA0, T))
        p("s_add_u32 s%d, s%d, s%d" % (sStA1, sStA0, T + 3))
        p("s_mul_i32 s%d, s%d, %d" % (sStB, T + 2, 4 * PHO))
        p("s_lshl_b32 s%d, s%d, 3" % (T, sOffWB))
        p("s_add_u32 s%d, s%d, s%d" % (sStB, sStB, T))
        p("s_add_u32 s%d, s%d, %d" % (sStB, sStB, WS_HO))
        p("s_cmp_lt_u32 s%d, 5" % sCB)
        p("s_cselect_b32 s%d, %s, 1.0" % (sScale, f32(QSCALE)))
        p("s_mov_b32 s%d, s%d" % (sScale + 1, sScale))

    def dma_w(self, s):
        a = s < 10
        base, off, rs, step = (self.vWA, sOffWA, sWA, 64 * 3840) if a else (self.vWB, sOffWB, sWB, 64 * 3456)
        g = []
        for i in range(4):
            x = []
            if i == 0:
                x.append(Ins("s_add_u32 m0, s%d, %d" % (sW4K, (s % self.NW) * 16384)))
            x.append(Ins("buffer_load_dwordx4 v%d, %s, s%d offen offset:%d lds" % (base + i, srd(rs), off, 1024 * i),
                         tag="W%d" % s))
            if i == 3:
                x.append(Ins("s_add_u32 s%d, s%d, %d" % (off, off, step)))
            g.append(x)
        return g

    def dma_x(self, s):
        g = []
        for i in range(4):
            x = []
            if i == 0:
                x.append(Ins("s_add_u32 m0, s%d, %d" % (sW4K, self.XB + (s % self.NX) * 16384)))
            x.append(Ins("buffer_load_dwordx4 v%d, %s, s%d offen offset:%d lds" % (self.vX + i, srd(sX), sOffX, 1024 * i),
                         tag="X%d" % s))
            if i == 3:
                x.append(Ins("s_add_u32 s%d, s%d, 128" % (sOffX, sOffX)))
            g.append(x)
        return g

    def p1_reads(self, n):
        s, ks, ct = n // 16, (n // 4) % 4, n % 4
        slot = s % self.NW
        base = self.vTR + ct if slot < 4 else self.vTR2 + ct
        off = (slot % 4) * 16384 + ks * 4096
        fr = self.vFR + 4 * (n % 8)
        r = []
        if ct == 0 and s < 10:
            r.append(Ins("ds_read_b128 %s, v%d offset:%d" % (ar(16 * s + 4 * ks, 4), self.vXR + ks, (s % self.NX) * 16384)))
        for i in range(2):
            r.append(Ins("ds_read_b64_tr_b16 %s, v%d offset:%d" % (vr(fr + 2 * i, 2), base, off + 1024 * i)))
        return r

    def p1_mfma(self, n, vrole):
        s, ks, ct = n // 16, (n // 4) % 4, n % 4
        acc = (self.accA if s < 10 else self.accB) + 16 * ct
        w = vr(self.vFR + 4 * (n % 8), 4)
        x = ar(16 * (s % 10) + 4 * ks, 4)
        c = "0" if (s % 10 == 0 and ks == 0) else vr(acc, 16)
        a, b = (x, w) if (vrole and s < 10) else (w, x)
        return Ins("v_mfma_f32_32x32x16_bf16 %s, %s, %s, %s" % (vr(acc, 16), a, b, c))

    def epi_a(self):
        g = []
        for ct in range(4):
            for t in range(2):
                a = self.accA + 16 * ct + 8 * t
                pk = self.vPk + 4 * ((2 * ct + t) % 4)
                for u in range(4):
                    g.append([Ins("v_pk_mul_f32 %s, %s, s[%d:%d]" % (vr(a + 2 * u, 2), vr(a + 2 * u, 2), sScale, sScale + 1))])
                for u in range(4):
                    g.append([Ins("v_cvt_pk_bf16_f32 v%d, v%d, v%d" % (pk + u, a + 2 * u, a + 2 * u + 1))])
                g.append([Ins("buffer_store_dwordx4 %s, v%d, %s, s%d offen offset:%d%s" %
                              (vr(pk, 4), self.vStA, srd(sWS), sStA1 if t else sStA0, 512 * ct, self.aux), tag="stA")])
        return g

    def epi_b(self):
        p = self.p
        for ct in range(4):
            for t in range(2):
                a = self.accB + 16 * ct + 8 * t
                pk = self.vPk + 4 * ((2 * ct + t) % 4)
                for u in range(4):
                    p("v_pk_mul_f32 %s, %s, %s op_sel_hi:[1,0]" % (vr(a + 2 * u, 2), vr(a + 2 * u, 2), vr(self.vG, 2)))
                for u in range(4):
                    p("v_cvt_pk_bf16_f32 v%d, v%d, v%d" % (pk + u, a + 2 * u, a + 2 * u + 1))
                for u in range(4):
                    p("v_pk_max_i16 v%d, v%d, 0" % (pk + u, pk + u))
                p("buffer_store_dwordx4 %s, v%d, %s, s%d offen offset:%d%s" %
                  (vr(pk, 4), self.vStB if ct < 2 else self.vStB2, srd(sWS), sStB, 512 * ct + 256 * t, self.aux))

    def p1_range(self, n0, n1, vrole, extra):
        p = self.p
        LOOK = 4
        for n in range(n0, n1):
            s, m = n // 16, n % 16
            p.add(self.p1_mfma(n, vrole))
            if m == 16 - LOOK and s + 1 < 20:
                p.wait_tag("W%d" % (s + 1), "X%d" % (s + 1))
                p("s_barrier")
            if n + LOOK < 320:
                p.add(self.p1_reads(n + LOOK))
            for g in extra.get(n, []):
                p.add(g)

    def p1_main(self):
        p = self.p
        extra = {}

        def put(n, g):
            extra.setdefault(n, []).append(g)

        for s in range(1, 20):
            n0 = 16 * s - 4
            gs = []
            if 4 < s + 3 < 20:
                gs += self.dma_w(s + 3)
            if 3 < s + 3 < 10:
                gs += self.dma_x(s + 3)
            for k, g in enumerate(gs):
                put(n0 + 1 + (k * 16) // len(gs), g)
        ea = self.epi_a()
        for k, g in enumerate(ea):
            put(164 + k // 2, g)
        p.wait_tag("W0", "X0")
        p("s_barrier")
        for n in range(4):
            p.add(self.p1_reads(n))
        lv, lb = self.lab("vrole"), self.lab("partb")
        p("s_cmp_ge_u32 s%d, 10" % sCB)
        p("s_cbranch_scc1 %s" % lv)
        mark = len(p.items)
        self.p1_range(0, 160, False, extra)
        p(lb + ":")
        keep = self.p
        alt = Prog()
        alt.items = list(keep.items[:mark])
        alt(lv + ":")
        self.p = alt
        self.p1_range(0, 160, True, extra)
        alt("s_branch %s" % lb)
        txt = alt.finalize()
        self.tail.raw(txt[txt.index(lv + ":"):])
        self.p = keep
        self.stamp(1)
        self.p1_range(160, 320, False, extra)
        self.stamp(2)
        self.signal(0, sRB, first=True)
        self.wait_flag(0, sRB, 16)
        p("v_and_b32 v2, 31, v1")
        p("v_lshlrev_b32 v2, 2, v2")
        p("s_lshl_b32 s%d, s%d, 2" % (sT, sRB))
        p("s_add_u32 s%d, s%d, s%d" % (sT, sT, sWAVE))
        p("s_lshl_b32 s%d, s%d, 7" % (sT, sT))
        p("s_add_u32 s%d, s%d, %d" % (sT, sT, WS_G))
        p("buffer_load_dword v%d, v2, %s, s%d offen%s" % (self.vG, srd(sWS), sT, self.aux))
        p("v_sub_f32 v%d, 1.0, v%d" % (self.vG, self.vG))
        self.epi_b()
        self.signal(1, sRB)

    KB, VB = 0, 30720
    vKD, vVD = 8, 12
    vKA, vK2, vVA, vVB = 16, 17, 18, 19
    vQO, vG2 = 20, 21
    rQA, rQB, rQ2A, rQ2B = 24, 28, 32, 34
    rK1, rK2, rV0, rV1 = 36, 40, 44, 48
    rP, rE = 52, 60
    rS = 72
    rO = 104
    rFar, rDiag = 136, 152

    def p2(self):
        p = self.p
        T = sT
        p("s_and_b32 s%d, s%d, 1" % (T, sXCD))
        p("s_lshl_b32 s%d, s%d, 3" % (T, T))
        p("s_and_b32 s%d, s%d, 7" % (T + 1, sJ))
        p("s_add_u32 s%d, s%d, s%d" % (sRB2, T, T + 1))
        p("s_lshr_b32 s%d, s%d, 1" % (T, sXCD))
        p("s_lshl_b32 s%d, s%d, 2" % (T, T))
        p("s_lshr_b32 s%d, s%d, 3" % (T + 1, sJ))
        p("s_add_u32 s%d, s%d, s%d" % (sHP, T, T + 1))
        for b in range(3):
            p("s_sub_u32 s%d, s%d, %d" % (T + 5, sRB2, b))
            p("s_max_i32 s%d, s%d, 0" % (T + 5, T + 5))
            self.wait_flag(0, T + 5, 16)
        p("s_barrier")
        self.stamp(3)
        p("v_lshlrev_b32 v%d, 4, v1" % self.vKD)
        p("v_mov_b32 v%d, v%d" % (self.vVD, self.vKD))
        for i in range(1, 4):
            p("v_add_u32 v%d, %d, v%d" % (self.vKD + i, i * (PQK - 640), self.vKD))
            p("v_add_u32 v%d, %d, v%d" % (self.vVD + i, i * (10240 - 656), self.vKD))
        p("s_mul_i32 s%d, s%d, 640" % (T, sHP))
        p("s_lshl_b32 s%d, s%d, 2" % (T + 1, sRB2))
        p("s_add_u32 s%d, s%d, s%d" % (T + 1, T + 1, sWAVE))
        p("s_mul_i32 s%d, s%d, %d" % (T + 2, T + 1, 4 * PQK))
        p("s_add_u32 s%d, s%d, s%d" % (T + 2, T + 2, T))
        p("s_add_u32 s%d, s%d, %d" % (T + 2, T + 2, WS_QK))
        p("s_mul_i32 s%d, s%d, %d" % (T + 3, T + 1, 40960))
        p("s_add_u32 s%d, s%d, s%d" % (T + 3, T + 3, T))
        p("s_add_u32 s%d, s%d, %d" % (T + 3, T + 3, WS_V))
        p("s_mul_i32 s%d, s%d, %d" % (T + 6, sWAVE, 4 * 640))
        p("s_mul_i32 s%d, s%d, %d" % (T + 7, sWAVE, 4 * 656))
        p("s_mov_b32 exec_hi, 0xff")
        for b in range(3):
            back = 2 - b
            p("s_sub_u32 s%d, s%d, %d" % (T + 4, T + 2, back * 16 * PQK - 80 * 128))
            p("s_sub_u32 s%d, s%d, %d" % (T + 5, T + 3, back * 163840))
            if back:
                p("s_cmp_lt_u32 s%d, %d" % (sRB2, back))
                p("s_cselect_b32 s%d, 0x%x, s%d" % (T + 4, OOB, T + 4))
                p("s_cselect_b32 s%d, 0x%x, s%d" % (T + 5, OOB, T + 5))
            p("s_add_u32 m0, s%d, %d" % (T + 6, self.KB + b * 16 * 640))
            for i in range(4):
                p("buffer_load_dwordx4 v%d, %s, s%d offen offset:%d%s lds" %
                  (self.vKD + i, srd(sWS), T + 4, 640 * i, self.aux), tag="KV")
            p("s_add_u32 m0, s%d, %d" % (T + 7, self.VB + b * 16 * 656))
            for i in range(4):
                p("buffer_load_dwordx4 v%d, %s, s%d offen offset:%d%s lds" %
                  (self.vVD + i, srd(sWS), T + 5, 656 * i, self.aux), tag="KV")
        p("s_mov_b32 exec_hi, -1")
        p("v_lshrrev_b32 v2, 5, v1")
        p("v_and_b32 v3, 31, v1")
        p("v_lshrrev_b32 v4, 3, v3")
        p("v_and_b32 v5, 7, v1")
        p("v_lshlrev_b32 v5, 4, v5")
        p("s_mov_b32 s%d, %d" % (T + 4, PQK))
        p("v_mad_u32_u24 v6, v4, s%d, v5" % (T + 4))
        p("v_lshl_add_u32 v7, v2, 7, v6")
        p("v_lshl_add_u32 v6, v2, 3, v6")
        p("buffer_load_dwordx4 %s, v7, %s, s%d offen%s" % (vr(self.rQA, 4), srd(sWS), T + 2, self.aux))
        p("buffer_load_dwordx4 %s, v7, %s, s%d offen offset:384%s" % (vr(self.rQB, 4), srd(sWS), T + 2, self.aux))
        p("buffer_load_dwordx2 %s, v6, %s, s%d offen offset:256%s" % (vr(self.rQ2A, 2), srd(sWS), T + 2, self.aux))
        p("v_lshlrev_b32 v6, 2, v3")
        p("s_lshl_b32 s%d, s%d, 7" % (T + 4, T + 1))
        p("s_add_u32 s%d, s%d, %d" % (T + 4, T + 4, WS_G))
        p("buffer_load_dword v%d, v6, %s, s%d offen%s" % (self.vG2, srd(sWS), T + 4, self.aux))
        p("s_mov_b32 s%d, %d" % (T + 4, PHO))
        p("v_mad_u32_u24 v6, v4, s%d, v5" % (T + 4))
        p("v_lshl_add_u32 v%d, v2, 7, v6" % self.vQO)
        p("s_mul_i32 s%d, s%d, %d" % (sStB, T + 1, 4 * PHO))
        p("s_add_u32 s%d, s%d, s%d" % (sStB, sStB, T))
        p("s_add_u32 s%d, s%d, %d" % (sStB, sStB, WS_HO + 216 * 128))
        p("v_mul_u32_u24 v6, 640, v4")
        p("v_add3_u32 v6, v6, v5, s%d" % (T + 6))
        p("v_lshl_add_u32 v%d, v2, 7, v6" % self.vKA)
        p("v_lshl_add_u32 v%d, v2, 3, v6" % self.vK2)
        p("v_and_b32 v6, 3, v1")
        p("v_bfe_u32 v7, v1, 2, 1")
        p("v_lshl_add_u32 v7, v7, 3, v6")
        p("v_bfe_u32 v4, v1, 3, 1")
        p("v_lshl_add_u32 v7, v4, 2, v7")
        p("v_add_u32 v4, 24, v7")
        p("v_add_u32 v5, 16, v6")
        p("v_add_u32 v6, 20, v6")
        p("v_cmp_gt_u32 vcc, 16, v3")
        p("v_cndmask_b32 v7, v5, v7, vcc")
        p("v_cndmask_b32 v4, v6, v4, vcc")
        p("v_cmp_gt_u32 vcc, 24, v3")
        p("v_cndmask_b32 v7, 40, v7, vcc")
        p("v_cndmask_b32 v4, 40, v4, vcc")
        p("v_mul_u32_u24 v5, 656, v2")
        p("s_add_u32 s%d, s%d, %d" % (T + 7, T + 7, self.VB))
        p("v_add_u32 v5, s%d, v5" % (T + 7))
        p("v_lshl_add_u32 v%d, v7, 4, v5" % self.vVA)
        p("v_lshl_add_u32 v%d, v4, 4, v5" % self.vVB)
        p("v_lshrrev_b32 v4, 4, v1")
        p("v_add_u32 v4, s%d, v4" % sRB2)
        p("v_mov_b32 v5, 0x3f803f80")
        p("v_cmp_le_u32 vcc, 2, v4")
        p("v_cndmask_b32 v%d, 0, v5, vcc" % self.rE)
        for k in range(1, 4):
            p("v_mov_b32 v%d, v%d" % (self.rE + k, self.rE))
        p("v_mul_u32_u24 v4, 656, v1")
        p("s_mov_b32 exec_hi, 0xffff")
        p("ds_write_b128 v4, %s offset:%d" % (vr(self.rE, 4), self.VB + 640), tag="ones")
        p("s_mov_b32 exec_hi, -1")
        big = 2.0 ** 100
        p("v_lshlrev_b32 v4, 2, v2")
        p("v_sub_u32 v4, v3, v4")
        p("v_cvt_f32_i32 v4, v4")
        p("v_add_f32 v4, 0.5, v4")
        p("v_mul_f32 v4, %s, v4" % f32(big))
        for r in range(16):
            c = 8 * (r // 4) + r % 4
            p("v_add_f32 v5, %s, v4" % f32(-c * big))
            p("v_min_f32 v%d, 0, v5" % (self.rDiag + r))
            p("v_min_f32 v%d, 0, -v5" % (self.rFar + r))
        p("v_cmp_eq_u32 vcc, 0, v2")
        for k in range(2):
            p("v_cndmask_b32 v%d, v%d, 0, vcc" % (self.rQ2B + k, self.rQ2A + k))
            p("v_cndmask_b32 v%d, 0, v%d, vcc" % (self.rQ2A + k, self.rQ2A + k))
        p("s_waitcnt vmcnt(0) lgkmcnt(0)")
        p("s_barrier")
        self.stamp(4)
        self.p2_main()
        self.p2_epi()
        self.stamp(5)
        self.signal(2, sRB2)

    def rdK1(self, u):
        return "ds_read_b128 %s, v%d offset:%d" % (vr(self.rK1, 4), self.vKA, self.KB + (u // 2) * 2560 + 384 * (u % 2))

    def rdK2(self, i):
        return "ds_read_b64 %s, v%d offset:%d" % (vr(self.rK2, 2), self.vK2, self.KB + i * 2560 + 256)

    def rdV(self, u, t):
        return "ds_read_b128 %s, v%d offset:%d" % (vr(self.rV1 if t else self.rV0, 4), self.vVB if u % 2 else self.vVA,
                                                    (4 * (u // 2) + 2 * t) * 656)

    def qk1(self, u):
        i = u // 2
        c = vr(self.rFar, 16) if i == 0 else vr(self.rDiag, 16) if i == 8 else "0"
        return "v_mfma_f32_32x32x16_bf16 %s, %s, %s, %s" % (
            vr(self.rS + 16 * (u % 2), 16), vr(self.rK1, 4), vr(self.rQB if u % 2 else self.rQA, 4), c)

    def qk2(self, u):
        s = vr(self.rS + 16 * (u % 2), 16)
        return "v_mfma_f32_32x32x8_bf16 %s, %s, %s, %s" % (s, vr(self.rK2, 2), vr(self.rQ2B if u % 2 else self.rQ2A, 2), s)

    def pv(self, u, t):
        o = vr(self.rO + 16 * (u % 2), 16)
        return "v_mfma_f32_32x32x16_bf16 %s, %s, %s, %s" % (
            o, vr(self.rV1 if t else self.rV0, 4), vr(self.rP + 4 * t, 4), "0" if (u < 2 and t == 0) else o)

    def p2_main(self):
        p = self.p
        NU = 18
        ex = lambda u, r: "v_exp_f32 v%d, v%d" % (self.rE + r % 8, self.rS + 16 * (u % 2) + r)
        cv = lambda k: "v_cvt_pk_bf16_f32 v%d, v%d, v%d" % (self.rP + k, self.rE + (2 * k) % 8, self.rE + (2 * k + 1) % 8)
        p(self.rdK1(0))
        p(self.rdK2(0))
        p(self.rdV(0, 0))
        p(self.qk1(0))
        p(self.rdK1(1))
        p(self.qk2(0))
        for u in range(NU):
            nx = u + 1 < NU
            if nx:
                p(self.qk1(u + 1))
                if u + 2 < NU:
                    p(self.rdK1(u + 2))
            if u:
                p(cv(6)); p(cv(7))
            for r in range(0, 4):
                p(ex(u, r))
            if u:
                p(self.pv(u - 1, 1))
            p(self.rdV(u, 1))
            p(cv(0)); p(cv(1))
            for r in range(4, 8):
                p(ex(u, r))
            if nx:
                p(self.qk2(u + 1))
                if (u + 1) % 2 == 1 and u + 2 < NU:
                    p(self.rdK2((u + 2) // 2))
            p(cv(2)); p(cv(3))
            for r in range(8, 12):
                p(ex(u, r))
            p(self.pv(u, 0))
            if nx:
                p(self.rdV(u + 1, 0))
            p(cv(4)); p(cv(5))
            for r in range(12, 16):
                p(ex(u, r))
        p(cv(6)); p(cv(7))
        p(self.pv(NU - 1, 1))

    def p2_epi(self):
        p = self.p
        slow, back = self.lab("slow"), self.lab("norm")
        lA, lB = self.rO + 12, self.rO + 16 + 12
        p("v_max_f32 v2, v%d, v%d" % (lA, lB))
        p("v_min_f32 v3, v%d, v%d" % (lA, lB))
        p("v_mov_b32 v4, 0")
        for hd in range(2):
            for k in range(0, 12):
                p("v_fma_f32 v4, v%d, 0, v4" % (self.rO + 16 * hd + k))
        p("v_fma_f32 v4, v%d, 0, v4" % lA)
        p("v_fma_f32 v4, v%d, 0, v4" % lB)
        p("v_add_f32 v2, v2, v4")
        p("v_cmp_nge_f32 vcc, %s, v2" % f32(2.0 ** 60))
        p("s_mov_b64 s[%d:%d], vcc" % (sT, sT + 1))
        p("v_cmp_nle_f32 vcc, %s, v3" % f32(2.0 ** -60))
        p("s_or_b64 vcc, vcc, s[%d:%d]" % (sT, sT + 1))
        if self.force_slow:
            p("s_branch %s" % slow)
        else:
            p("s_cbranch_vccnz %s" % slow)
        p(back + ":")
        for hd in range(2):
            o = self.rO + 16 * hd
            p("v_rcp_f32 v2, v%d" % (o + 12))
            p("v_mul_f32 v2, v%d, v2" % self.vG2)
            for k in range(6):
                p("v_pk_mul_f32 %s, %s, v[2:3] op_sel_hi:[1,0]" % (vr(o + 2 * k, 2), vr(o + 2 * k, 2)))
            for k in range(4):
                p("v_cvt_pk_bf16_f32 v%d, v%d, v%d" % (self.rS + 4 * hd + k, o + 2 * k, o + 2 * k + 1))
            for k in range(2):
                p("v_cvt_pk_bf16_f32 v%d, v%d, v%d" % (self.rS + 8 + 2 * hd + k, o + 8 + 2 * k, o + 9 + 2 * k))
            p("buffer_store_dwordx4 %s, v%d, %s, s%d offen offset:%d%s" %
              (vr(self.rS + 4 * hd, 4), self.vQO, srd(sWS), sStB, 384 * hd, self.aux))
        p("s_mov_b32 exec_hi, 0")
        p("buffer_store_dwordx4 %s, v%d, %s, s%d offen offset:256%s" %
          (vr(self.rS + 8, 4), self.vQO, srd(sWS), sStB, self.aux))
        p("s_mov_b32 exec_hi, -1")
        self.p2_slow(slow, back)

    def p2_slow(self, slow, back):
        q = Prog()
        T = sT
        S, P = self.rS, self.rP
        aK1, aK2, aV = 4, 5, 6
        vM = 7
        q(slow + ":")
        q("s_nop 15")
        q("s_lshl_b32 s%d, s%d, 2" % (T, sRB2))
        q("s_add_u32 s%d, s%d, s%d" % (T, T, sWAVE))
        q("s_sub_u32 s%d, 8, s%d" % (T, T))
        q("s_max_i32 s%d, s%d, 0" % (T, T))
        for hd in range(2):
            O = self.rO + 16 * hd
            for ps in range(2):
                lp, nm, nm2 = self.lab("sl"), self.lab("nm"), self.lab("nm2")
                q("s_mov_b32 s%d, s%d" % (T + 1, T))
                q("s_mul_i32 s%d, s%d, 2560" % (T + 2, T))
                q("s_mul_i32 s%d, s%d, 2624" % (T + 3, T))
                q("v_add_u32 v%d, s%d, v%d" % (aK1, T + 2, self.vKA))
                q("v_add_u32 v%d, s%d, v%d" % (aK2, T + 2, self.vK2))
                q("v_add_u32 v%d, s%d, v%d" % (aV, T + 3, self.vVB if hd else self.vVA))
                if ps == 0:
                    q("v_mov_b32 v%d, 0xff800000" % vM)
                else:
                    for r in range(16):
                        q("v_mov_b32 v%d, 0" % (O + r))
                q(lp + ":")
                q("ds_read_b128 %s, v%d offset:%d" % (vr(self.rK1, 4), aK1, self.KB + 384 * hd))
                q("ds_read_b64 %s, v%d offset:%d" % (vr(self.rK2, 2), aK2, self.KB + 256))
                q("ds_read_b128 %s, v%d" % (vr(self.rV0, 4), aV))
                q("ds_read_b128 %s, v%d offset:%d" % (vr(self.rV1, 4), aV, 2 * 656))
                q("s_waitcnt lgkmcnt(0)")
                q("v_mfma_f32_32x32x16_bf16 %s, %s, %s, 0" % (vr(S, 16), vr(self.rK1, 4), vr(self.rQB if hd else self.rQA, 4)))
                q("v_mfma_f32_32x32x8_bf16 %s, %s, %s, %s" %
                  (vr(S, 16), vr(self.rK2, 2), vr(self.rQ2B if hd else self.rQ2A, 2), vr(S, 16)))
                q("s_nop 15")
                q("v_mov_b32 v2, 0xff800000")
                for which, reg, lab in ((0, self.rFar, nm), (8, self.rDiag, nm2)):
                    q("s_cmp_lg_u32 s%d, %d" % (T + 1, which))
                    q("s_cbranch_scc1 %s" % lab)
                    for r in range(16):
                        q("v_cmp_eq_f32 vcc, 0, v%d" % (reg + r))
                        q("v_cndmask_b32 v%d, v2, v%d, vcc" % (S + r, S + r))
                    q(lab + ":")
                if ps == 0:
                    for r in range(0, 16, 2):
                        q("v_max3_f32 v%d, v%d, v%d, v%d" % (vM, S + r, S + r + 1, vM))
                else:
                    for r in range(16):
                        q("v_sub_f32 v%d, v%d, v%d" % (S + r, S + r, vM))
                        q("v_exp_f32 v%d, v%d" % (S + r, S + r))
                    for k in range(8):
                        q("v_cvt_pk_bf16_f32 v%d, v%d, v%d" % (P + k, S + 2 * k, S + 2 * k + 1))
                    for t in range(2):
                        q("v_mfma_f32_32x32x16_bf16 %s, %s, %s, %s" %
                          (vr(O, 16), vr(self.rV1 if t else self.rV0, 4), vr(P + 4 * t, 4), vr(O, 16)))
                q("v_add_u32 v%d, 2560, v%d" % (aK1, aK1))
                q("v_add_u32 v%d, 2560, v%d" % (aK2, aK2))
                q("v_add_u32 v%d, 2624, v%d" % (aV, aV))
                q("s_add_u32 s%d, s%d, 1" % (T + 1, T + 1))
                q("s_cmp_lt_u32 s%d, 9" % (T + 1))
                q("s_cbranch_scc1 %s" % lp)
                if ps == 0:
                    q("v_mov_b32 v2, v%d" % vM)
                    q("v_permlane32_swap_b32 v2, v%d" % vM)
                    q("v_max_f32 v%d, v2, v%d" % (vM, vM))
        q("s_nop 15")
        q("s_branch %s" % back)
        self.tail.raw(q.finalize())

    NS3, RED = 12, 98304
    vD3, vT3, vA3, vRW, vRR, vO3 = 8, 12, 14, 18, 22, 24
    rW3 = 32
    rSum = 48
    acc3 = 160
    rAct = 0
    rWO = 128
    NA = 9

    def p3(self, done):
        p = self.p
        T = sT
        p("s_cmp_ge_u32 s%d, 30" % sJ)
        p("s_cbranch_scc1 %s" % done)
        p("s_mul_i32 s%d, s%d, 52" % (T, sJ))
        p("s_lshr_b32 s%d, s%d, 8" % (T, T))
        p("s_mul_i32 s%d, s%d, 5" % (T + 1, T))
        p("s_sub_u32 s%d, s%d, s%d" % (T + 1, sJ, T + 1))
        p("s_and_b32 s%d, s%d, 3" % (T + 2, sXCD))
        p("s_mul_i32 s%d, s%d, 6" % (T + 2, T + 2))
        p("s_add_u32 s%d, s%d, s%d" % (sMB, T + 2, T))
        p("s_lshr_b32 s%d, s%d, 2" % (T + 2, sXCD))
        p("s_mul_i32 s%d, s%d, 5" % (T + 2, T + 2))
        p("s_add_u32 s%d, s%d, s%d" % (sNB, T + 2, T + 1))
        sW2o, sWOo, sA0, sA1, sA2, sL3, sRlo, sRhi = 71, 72, 73, 74, 75, 76, 77, 78
        p("v_lshrrev_b32 v2, 3, v1")
        p("v_bfe_u32 v3, v1, 4, 1")
        p("v_lshlrev_b32 v3, 2, v3")
        p("v_and_b32 v4, 7, v1")
        p("v_xor_b32 v3, v3, v4")
        p("v_mul_u32_u24 v5, 1280, v2")
        p("v_lshl_add_u32 v%d, v3, 4, v5" % self.vD3)
        p("v_add_u32 v%d, %d, v%d" % (self.vD3 + 1, 8 * 1280 - 1024, self.vD3))
        p("s_lshl_b32 s%d, s%d, 7" % (T, sNB))
        p("s_mul_i32 s%d, s%d, %d" % (sW2o, sWAVE, 27 * 16 * 1280))
        p("s_add_u32 s%d, s%d, s%d" % (sW2o, sW2o, T))
        p("s_mul_i32 s%d, s%d, %d" % (sWOo, sWAVE, 10 * 16 * 1280))
        p("s_add_u32 s%d, s%d, s%d" % (sWOo, sWOo, T))
        p("s_mul_i32 s%d, s%d, %d" % (sL3, sWAVE, self.NS3 * 2048))
        p("s_barrier")

        def dma(k):
            rs, off = (sW2, sW2o) if k < 27 else (sWO, sWOo)
            return [[Ins("s_add_u32 m0, s%d, %d" % (sL3, (k % self.NS3) * 2048)),
                     Ins("buffer_load_dwordx4 v%d, %s, s%d offen lds" % (self.vD3, srd(rs), off), tag="w%d" % k)],
                    [Ins("buffer_load_dwordx4 v%d, %s, s%d offen offset:1024 lds" % (self.vD3 + 1, srd(rs), off), tag="w%d" % k),
                     Ins("s_add_u32 s%d, s%d, %d" % (off, off, 16 * 1280))]]

        for k in range(self.NS3):
            p.add(dma(k))
        p("s_mul_i32 s%d, s%d, 11" % (T + 1, sMB))
        p("s_add_u32 s%d, s%d, s%d" % (T + 2, T + 1, sWAVE))
        p("s_mul_i32 s%d, s%d, %d" % (T + 2, T + 2, 8 * 1280))
        p("s_add_u32 s%d, s%d, s%d" % (T + 2, T + 2, T))
        p("v_lshl_add_u32 v5, v4, 4, v5")
        p("v_add_u32 v%d, s%d, v5" % (self.vO3, T + 2))
        p("v_add_u32 v%d, %d, v%d" % (self.vO3 + 1, 32 * 1280, self.vO3))
        p("s_cmp_eq_u32 s%d, 3" % sWAVE)
        self.csel(T + 2, OOB, 64 * 1280)
        p("v_add_u32 v%d, s%d, v%d" % (self.vO3 + 2, T + 2, self.vO3))
        p("v_lshlrev_b32 v5, 1, v4")
        p("v_xor_b32 v5, v5, v2")
        p("v_lshlrev_b32 v5, 4, v5")
        p("v_lshl_add_u32 v5, v2, 8, v5")
        p("s_lshl_b32 s%d, s%d, 11" % (T + 2, sWAVE))
        p("s_add_u32 s%d, s%d, %d" % (T + 2, T + 2, self.RED))
        p("v_add_u32 v%d, s%d, v5" % (self.vRR, T + 2))
        p("v_xor_b32 v%d, 16, v%d" % (self.vRR + 1, self.vRR))
        p("v_lshrrev_b32 v2, 5, v1")
        p("v_bfe_u32 v3, v1, 2, 2")
        p("v_lshl_add_u32 v5, v2, 3, v3")
        p("v_lshlrev_b32 v5, 7, v5")
        p("v_bfe_u32 v6, v1, 3, 1")
        p("v_lshl_add_u32 v5, v6, 6, v5")
        p("v_bfe_u32 v6, v1, 4, 1")
        p("v_lshl_add_u32 v5, v6, 5, v5")
        p("v_and_b32 v6, 1, v1")
        p("v_lshl_add_u32 v5, v6, 4, v5")
        p("v_bfe_u32 v6, v1, 1, 1")
        p("v_lshl_add_u32 v5, v6, 3, v5")
        p("v_add_u32 v%d, s%d, v5" % (self.vT3, sL3))
        p("v_xor_b32 v%d, 64, v%d" % (self.vT3 + 1, self.vT3))
        p("v_and_b32 v3, 31, v1")
        p("v_lshlrev_b32 v5, 1, v2")
        p("v_xor_b32 v5, v5, v4")
        p("v_lshlrev_b32 v5, 4, v5")
        p("v_lshl_add_u32 v5, v3, 8, v5")
        p("s_lshl_b32 s%d, s%d, 13" % (T + 2, sWAVE))
        p("s_add_u32 s%d, s%d, %d" % (T + 2, T + 2, self.RED))
        p("v_add_u32 v%d, s%d, v5" % (self.vRW, T + 2))
        for k, x in ((1, 16), (2, 64), (3, 80)):
            p("v_xor_b32 v%d, %d, v%d" % (self.vRW + k, x, self.vRW))
        p("v_lshrrev_b32 v5, 3, v3")
        p("v_lshlrev_b32 v6, 4, v4")
        p("v_lshl_add_u32 v6, v2, 7, v6")
        p("s_mov_b32 s%d, %d" % (T + 2, PHO))
        p("v_mad_u32_u24 v6, v5, s%d, v6" % (T + 2))
        p("s_mul_i32 s%d, s%d, %d" % (T + 2, T + 1, PHO))
        p("s_add_u32 s%d, s%d, %d" % (T + 2, T + 2, WS_HO))
        p("v_add_u32 v%d, s%d, v6" % (self.vA3, T + 2))
        p("v_add_u32 v%d, %d, v%d" % (self.vA3 + 1, 4 * PHO, self.vA3))
        p("v_add_u32 v%d, %d, v%d" % (self.vA3 + 2, 8 * PHO, self.vA3))
        p("v_mov_b32 v6, 0x%x" % OOB)
        p("v_cmp_gt_u32 vcc, 3, v5")
        p("v_cndmask_b32 v%d, v6, v%d, vcc" % (self.vA3 + 2, self.vA3 + 2))
        p("s_mul_i32 s%d, s%d, %d" % (sA0, sWAVE, 27 * 256))
        p("s_add_u32 s%d, s%d, 4096" % (sA1, sA0))
        p("s_mul_i32 s%d, s%d, %d" % (sA2, sWAVE, 10 * 256))
        p("s_add_u32 s%d, s%d, %d" % (sA2, sA2, 216 * 128))
        p("s_lshr_b32 s%d, s%d, 4" % (sRlo, T + 1))
        p("s_add_u32 s%d, s%d, 10" % (sRhi, T + 1))
        p("s_lshr_b32 s%d, s%d, 4" % (sRhi, sRhi))
        p("s_min_u32 s%d, s%d, 15" % (sRhi, sRhi))
        self.wait_flag(1, sRlo, 15)
        self.wait_flag(1, sRhi, 15)
        self.stamp(6)

        frs = [(k, rt) for k in range(27) for rt in range(3)] + [(27 + k, rt) for rt in range(3) for k in range(10)]
        NR = 3 * self.NA

        def act(f):
            k, rt = frs[f]
            so, im = (sA0, 256 * k) if k < 16 else (sA1, 256 * (k - 16)) if k < 27 else (sA2, 256 * (k - 27))
            return Ins("buffer_load_dwordx4 %s, v%d, %s, s%d offen offset:%d%s" %
                       (ar(self.rAct + 4 * (f % NR), 4), self.vA3 + rt, srd(sWS), so, im, self.aux))

        def wreg(k, ct, n=4, o=0):
            return vr(self.rW3 + 8 * (k % 2) + 4 * ct + o, n) if k < 27 else ar(self.rWO + 8 * (k - 27) + 4 * ct + o, n)

        def trs(k):
            return [Ins("ds_read_b64_tr_b16 %s, v%d offset:%d" %
                        (wreg(k, ct, 2, 2 * i), self.vT3 + ct, (k % self.NS3) * 2048 + 512 * i), tag="t%d" % k)
                    for ct in range(2) for i in range(2)]

        for f in range(NR):
            p.add(act(f))
        p.wait_tag("w0")
        p.add(trs(0))
        nf = len(frs)
        side = {}

        def put(n, x):
            side.setdefault(n, []).append(x)

        from asmlib import pseudo
        nxt = self.NS3
        for k in range(1, 37):
            n = 6 * (k - 1) if k < 27 else 6 * 26 + 2 * (k - 27)
            put(n, pseudo("wait_tag", {"w%d" % k}))
            t = trs(k)
            put(n, t[:2])
            put(n + 1, t[2:])
            if nxt < 37:
                d = dma(nxt)
                put(n + 2, [pseudo("wait_ldstag", {"t%d" % (k - 1)}), d[0]])
                put(n + 3, d[1])
                nxt += 1
        red_w, red_r = {}, {}
        for rt in range(3):
            buf = (rt % 2) * 32768
            w = []
            for ct in range(2):
                for t in range(2):
                    for u in range(2):
                        a = self.acc3 + 32 * rt + 16 * ct + 8 * t + 4 * u
                        w.append(Ins("ds_write_b128 v%d, %s offset:%d" % (self.vRW + 2 * t + u, vr(a, 4), buf + 128 * ct), tag="rw"))
            r = []
            for src in range(4):
                for u in range(2):
                    r.append(Ins("ds_read_b128 %s, v%d offset:%d" % (vr(self.rSum + 8 * src + 4 * u, 4), self.vRR + u, buf + 8192 * src)))
            f = []
            for a, b in ((0, 8), (16, 24), (0, 16)):
                for k in range(4):
                    f.append(Ins("v_pk_add_f32 %s, %s, %s" % (vr(self.rSum + a + 2 * k, 2), vr(self.rSum + a + 2 * k, 2), vr(self.rSum + b + 2 * k, 2))))
            for k in range(4):
                f.append(Ins("v_cvt_pk_bf16_f32 v%d, v%d, v%d" % (28 + k, self.rSum + 2 * k, self.rSum + 2 * k + 1)))
            f.append(Ins("buffer_store_dwordx4 v[28:31], v%d, %s, 0 offen" % (self.vO3 + rt, srd(sOUT))))
            red_w[rt], red_r[rt] = w, (r, f)
        for rt in range(2):
            n0 = 162 + 20 * (rt + 1)
            for k, x in enumerate(red_w[rt]):
                put(n0 + 2 + k, x)
            put(n0 + 11, [pseudo("wait_ldstag", {"rw"}), Ins("s_barrier")])
            for k, x in enumerate(red_r[rt][0]):
                put(n0 + 11 + k // 2, x)
            for k, x in enumerate(red_r[rt][1]):
                put(min(n0 + 16 + k // 4, n0 + 19), x)
        for f in range(nf):
            k, rt = frs[f]
            for ct in range(2):
                n = 2 * f + ct
                acc = vr(self.acc3 + 32 * rt + 16 * ct, 16)
                p("v_mfma_f32_32x32x16_bf16 %s, %s, %s, %s" %
                  (acc, wreg(k, ct), ar(self.rAct + 4 * (f % NR), 4), "0" if k == 0 else acc))
                for x in side.get(n, []):
                    p.add(x)
                if ct == 1 and f + NR < nf:
                    if f + NR == 81:
                        self.stamp(7)
                        self.wait_flag(2, sRlo, 16)
                        self.wait_flag(2, sRhi, 16)
                        self.stamp(8)
                    p.add(act(f + NR))
        self.stamp(9)
        p.add(red_w[2])
        p.wait_lds("rw")
        p("s_barrier")
        p.add(red_r[2][0])
        p.add(red_r[2][1])
        self.stamp(10)

    def kernel(self, name, body):
        self.p, self.tail = Prog(), Prog()
        done = self.lab("done")
        body(done)
        txt = ".globl %s\n.p2align 8\n.type %s,@function\n%s:\n" % (name, name, name)
        txt += self.p.finalize() + done + ":\n    s_endpgm\n" + self.tail.finalize()
        return txt

    @staticmethod
    def desc(name):
        return """.section .rodata,"a"
.p2align 6
.amdhsa_kernel %s
  .amdhsa_next_free_vgpr 512
  .amdhsa_next_free_sgpr 102
  .amdhsa_accum_offset 256
  .amdhsa_group_segment_fixed_size 0
  .amdhsa_kernarg_size 80
  .amdhsa_user_sgpr_count 2
  .amdhsa_user_sgpr_kernarg_segment_ptr 1
  .amdhsa_system_sgpr_workgroup_id_x 1
  .amdhsa_float_denorm_mode_32 3
.end_amdhsa_kernel
""" % name

    def build(self):
        head = '.amdgcn_target "amdgcn-amd-amdhsa--gfx950"\n.text\n'
        if self.split:
            def k0(done):
                self.prologue(256, done)
                self.p("s_cmp_lt_u32 s%d, 30" % sJ)
                self.p("s_cbranch_scc1 %s" % done)
                self.gate()

            def k1(done):
                self.prologue(240, done)
                self.p1_setup()
                self.p1_main()

            def k2(done):
                self.prologue(256, done)
                self.p2()

            def k3(done):
                self.prologue(240, done)
                self.p3(done)
            ks = [("k0_kernel", k0, 256), ("k1_kernel", k1, 240), ("k2_kernel", k2, 256), ("k3_kernel", k3, 240)]
            top = "".join("; @launch kernel=%s grid=(%d,1,1) block=(256,1,1) lds=163840\n" % (n, g) for n, _, g in ks)
            return top + head + "".join(self.kernel(n, b) for n, b, _ in ks) + "".join(self.desc(n) for n, _, _ in ks)

        def body(done):
            p = self.p
            self.prologue(256, done)
            lg, l2, fin = self.lab("gate"), self.lab("p2"), self.lab("fin")
            p("s_cmp_ge_u32 s%d, 30" % sJ)
            p("s_cbranch_scc1 %s" % lg)
            self.p1_setup()
            self.p1_main()
            p.drain()
            p(l2 + ":")
            self.p2()
            self.p3(fin)
            p(fin + ":")
            self.flush_stamps(11)
            keep = self.p
            self.p = Prog()
            self.p(lg + ":")
            self.gate()
            self.p.drain()
            self.p("s_branch %s" % l2)
            self.tail.raw(self.p.finalize())
            self.p = keep
        name = NAME + "_kernel"
        top = "; @launch grid=(256,1,1) block=(256,1,1) lds=163840\n"
        return top + head + self.kernel(name, body) + self.desc(name)


if __name__ == "__main__":
    import argparse
    ap = argparse.ArgumentParser()
    ap.add_argument("-o", default="k.s")
    ap.add_argument("--split", action="store_true")
    ap.add_argument("--stamps", action="store_true")
    ap.add_argument("--slow", action="store_true")
    ap.add_argument("--diag", default=None)
    a = ap.parse_args()
    open(a.o, "w").write(Gen(split=a.split, stamps=a.stamps, force_slow=a.slow,
                             diag=tuple(int(x) for x in a.diag.split(",")) if a.diag else None).build())
```

```python
import sys, struct, math
from asmlib import Prog, Ins

NAME = "gated_mix__sliding_block__dense_activation_relu__prompt"

PQK = 161 * 128
PHO = 297 * 128
WS_FLAG = 0
WS_G = 16384
WS_TS = 32768
WS_QK = 131072
WS_V = WS_QK + 256 * PQK
WS_HO = WS_V + 256 * 10240
WS_END = WS_HO + 256 * PHO
OOB = 0x80000000
QSCALE = math.log2(math.e) / math.sqrt(20.0)


def f32(x):
    return "0x%08x" % struct.unpack("<I", struct.pack("<f", x))[0]


sX, sWA, sWB, sWS, sW2, sWO, sOUT, sDBG = 8, 12, 16, 20, 24, 28, 32, 36
sGATE = 40
sXCD, sJ, sWAVE = 3, 4, 5
sRB, sCB = 6, 7
sT = 60
sW4K = 70
sOffWA, sOffWB, sOffX = 71, 72, 73
sStA0, sStA1, sStB, sScale = 74, 75, 76, 78
sRB2, sHP = 80, 81
sMB, sNB = 82, 83
sTS = 84
sTSB = 86


def srd(r):
    return "s[%d:%d]" % (r, r + 3)


def vr(a, n=1):
    return "v%d" % a if n == 1 else "v[%d:%d]" % (a, a + n - 1)


def ar(a, n=1):
    return "a%d" % a if n == 1 else "a[%d:%d]" % (a, a + n - 1)


class Gen:
    def __init__(self, split=False, stamps=False, force_slow=False, diag=None, pre=None):
        self.pre = pre
        self.diag = diag
        self.split = split
        self.stamps = stamps
        self.force_slow = force_slow
        self.p = Prog()
        self.tail = Prog()
        self.uid = 0
        self.aux = "" if split else " sc1"

    def lab(self, s):
        self.uid += 1
        return "L_%s_%d" % (s, self.uid)

    def csel(self, d, a, b):
        self.p("s_mov_b32 s%d, 0x%x" % (d, b))
        self.p("s_cmov_b32 s%d, 0x%x" % (d, a))

    def stamp(self, k):
        if self.diag:
            if k in self.diag[:2]:
                self.p.raw("    %s s[%d:%d]\n    s_waitcnt lgkmcnt(0)\n    s_mov_b32 s%d, s%d" %
                           ("s_memrealtime" if self.diag[2] else "s_memtime", sTS, sTS + 1, 88 + k, sTS))
            return
        if not self.stamps:
            return
        self.p.raw("    s_memtime s[%d:%d]\n    s_waitcnt lgkmcnt(0)\n    s_mov_b32 s%d, s%d" % (sTS, sTS + 1, 88 + k, sTS))

    def flush_stamps(self, n):
        if self.diag:
            a, b, real, wg = self.diag
            e = self.lab("dg")
            self.p.raw("""    s_cmp_lg_u32 s2, %d
    s_cbranch_scc1 %s
    s_sub_u32 s60, s%d, s%d
    %s
    s_min_u32 s60, s60, 100000
    s_memrealtime s[62:63]
    s_waitcnt lgkmcnt(0)
%s_l:
    s_memrealtime s[64:65]
    s_waitcnt lgkmcnt(0)
    s_sub_u32 s64, s64, s62
    s_cmp_lt_u32 s64, s60
    s_cbranch_scc1 %s_l
%s:""" % (wg, e, 88 + b, 88 + a, "s_lshl_b32 s60, s60, 2" if real else "s_lshr_b32 s60, s60, 2", e, e, e))
            return
        if not self.stamps:
            return
        p = self.p
        p.drain()
        p("s_lshl_b32 s%d, s2, 2" % sT)
        p("s_add_u32 s%d, s%d, s%d" % (sT, sT, sWAVE))
        p("s_lshl_b32 s%d, s%d, 6" % (sT, sT))
        p("s_add_u32 s%d, s%d, %d" % (sT, sT, WS_TS))
        p("v_mov_b32 v2, s%d" % sT)
        p("s_mov_b64 exec, 1")
        for k in range(n):
            p("v_mov_b32 v3, s%d" % (88 + k))
            p("buffer_store_dword v3, v2, %s, 0 offen offset:%d" % (srd(sWS), 4 * k))
        p("s_getreg_b32 s%d, hwreg(HW_REG_XCC_ID)" % sT)
        p("v_mov_b32 v3, s%d" % sT)
        p("buffer_store_dword v3, v2, %s, 0 offen offset:60" % srd(sWS))
        p("s_mov_b64 exec, -1")

    def prologue(self, nwg, done):
        p = self.p
        p.reset()
        p("s_cmp_ge_u32 s2, %d" % nwg)
        p("s_cbranch_scc1 %s" % done)
        p("s_load_dwordx4 s[44:47], s[0:1], 0")
        p("s_load_dwordx2 s[48:49], s[0:1], 16")
        p("s_load_dwordx4 s[52:55], s[0:1], 32")
        p("s_load_dwordx8 s[60:67], s[0:1], 48")
        p("v_and_b32 v1, 63, v0")
        p("v_lshrrev_b32 v2, 6, v0")
        p("s_and_b32 s%d, s2, 7" % sXCD)
        p("v_readfirstlane_b32 s%d, v2" % sWAVE)
        p("s_lshr_b32 s%d, s2, 3" % sJ)
        p("s_waitcnt lgkmcnt(0)")
        for r, b, n in ((sX, 44, 2048 * 1280), (sWA, 46, 640 * 3840), (sWB, 52, 640 * 3456), (sWS, 66, WS_END),
                        (sW2, 54, 1728 * 1280), (sWO, 48, 640 * 1280), (sOUT, 62, 2048 * 1280), (sDBG, 64, 256),
                        (sGATE, 60, 1280)):
            p("s_mov_b32 s%d, s%d" % (r, b))
            p("s_mov_b32 s%d, s%d" % (r + 1, b + 1))
            p("s_mov_b32 s%d, %d" % (r + 2, n))
            p("s_mov_b32 s%d, 0x20000" % (r + 3))
        p("s_lshl_b32 s%d, s%d, 12" % (sW4K, sWAVE))
        self.stamp(0)
        if self.pre is not None:
            aux = " nt" if "n" in self.pre else ""
            p("s_lshl_b32 s%d, s2, 8" % sT)
            p("v_add_u32 v2, s%d, v0" % sT)
            p("v_lshlrev_b32 v2, 4, v2")
            k = 0
            lst = [(sX, 3), (sWA, 3)]
            if "a" in self.pre:
                lst += [(sWB, 3), (sW2, 3), (sWO, 1)]
            for r, n in lst:
                for i in range(n):
                    p("s_mov_b32 s%d, %d" % (sT, i << 20))
                    p("buffer_load_dwordx4 %s, v2, %s, s%d offen%s" % (vr(8 + 4 * k, 4), srd(r), sT, aux))
                    k += 1
            if "c" in self.pre:
                p("s_getpc_b64 s[%d:%d]" % (sT + 2, sT + 3))
                p("s_and_b32 s%d, s%d, 7" % (sT, sJ))
                p("s_lshl_b32 s%d, s%d, 12" % (sT, sT))
                p("v_lshlrev_b32 v3, 4, v0")
                p("v_add_u32 v3, s%d, v3" % sT)
                p("global_load_dwordx4 %s, v3, s[%d:%d]" % (vr(8 + 4 * k, 4), sT + 2, sT + 3))
            if "w" in self.pre:
                p("s_waitcnt vmcnt(0)")
            self.stamp(11)

    def signal(self, phase, s_rb, first=False):
        if self.split:
            return
        p = self.p
        p("s_waitcnt vmcnt(0)")
        p("s_barrier")
        skip = self.lab("sig")
        p("s_cmp_lg_u32 s%d, 0" % sWAVE)
        p("s_cbranch_scc1 %s" % skip)
        p("s_mov_b64 exec, 1")
        if first:
            self.spin(srd(sDBG), None, 0, 1)
        p("s_lshl_b32 s%d, s%d, 8" % (sT, s_rb))
        p("v_mov_b32 v2, s%d" % sT)
        p("v_mov_b32 v3, 1")
        p("s_mov_b32 s%d, %d" % (sT, WS_FLAG + phase * 4096))
        p("buffer_atomic_add v3, v2, %s, s%d offen sc1" % (srd(sWS), sT))
        p("s_mov_b64 exec, -1")
        p(skip + ":")
        if first:
            p("s_barrier")

    def spin(self, srd_s, s_idx, base, target):
        p = self.p
        lp, ok = self.lab("spin"), self.lab("ok")
        if s_idx is None:
            p("v_mov_b32 v2, %d" % base)
        else:
            p("s_lshl_b32 s%d, s%d, 8" % (sT, s_idx))
            p("s_add_u32 s%d, s%d, %d" % (sT, sT, base))
            p("v_mov_b32 v2, s%d" % sT)
        p("s_mov_b32 s%d, 200000" % (sT + 1))
        p(lp + ":")
        p("buffer_load_dword v3, v2, %s, 0 offen sc1" % srd_s)
        p("s_waitcnt vmcnt(0)")
        p("v_readfirstlane_b32 s%d, v3" % (sT + 2))
        p("s_sub_u32 s%d, s%d, 1" % (sT + 1, sT + 1))
        p("s_cbranch_scc1 %s" % ok)
        p("s_cmp_ge_u32 s%d, %d" % (sT + 2, target))
        p("s_cbranch_scc1 %s" % ok)
        p("s_sleep 2")
        p("s_branch %s" % lp)
        p(ok + ":")

    def wait_flag(self, phase, s_idx, target):
        if self.split:
            return
        self.spin(srd(sWS), s_idx, WS_FLAG + phase * 4096, target)

    def gate(self):
        p = self.p
        p("s_lshl_b32 s%d, s%d, 1" % (sRB, sXCD))
        p("s_add_u32 s%d, s%d, s%d" % (sRB, sRB, sJ))
        p("s_sub_u32 s%d, s%d, 30" % (sRB, sRB))
        if not self.split:
            skip = self.lab("init")
            p("s_cmp_lg_u32 s2, 240")
            p("s_cbranch_scc1 %s" % skip)
            p("s_cmp_lg_u32 s%d, 0" % sWAVE)
            p("s_cbranch_scc1 %s" % skip)
            p("v_lshlrev_b32 v2, 8, v1")
            p("v_mov_b32 v3, 0")
            p("buffer_store_dword v3, v2, %s, 0 offen sc1" % srd(sWS))
            p("s_waitcnt vmcnt(0)")
            p("v_mov_b32 v4, 1")
            p("s_mov_b64 exec, 1")
            p("buffer_store_dword v4, v3, %s, 0 offen sc1" % srd(sDBG))
            p("s_mov_b64 exec, -1")
            p(skip + ":")
        p("v_and_b32 v4, 15, v1")
        p("v_lshrrev_b32 v5, 4, v1")
        p("v_lshlrev_b32 v6, 4, v4")
        p("v_mul_u32_u24 v7, 1280, v5")
        p("v_add_u32 v7, v7, v6")
        p("s_lshl_b32 s%d, s%d, 2" % (sT, sRB))
        p("s_add_u32 s%d, s%d, s%d" % (sT, sT, sWAVE))
        p("s_mul_i32 s%d, s%d, %d" % (sT + 1, sT, 32 * 1280))
        for i in range(5):
            p("buffer_load_dwordx4 %s, v6, %s, 0 offen offset:%d" % (vr(16 + 4 * i, 4), srd(sGATE), 256 * i))
        for ps in range(8):
            for i in range(5):
                p("buffer_load_dwordx4 %s, v7, %s, s%d offen offset:%d" %
                  (vr(40 + 20 * ps + 4 * i, 4), srd(sX), sT + 1, 256 * i))
            p("s_add_u32 s%d, s%d, %d" % (sT + 1, sT + 1, 4 * 1280))
        p("v_mov_b32 v9, 0")
        for ps in range(8):
            for k in range(20):
                x, g = 40 + 20 * ps + k, 16 + k
                p("v_lshlrev_b32 v12, 16, v%d" % x)
                p("v_lshlrev_b32 v13, 16, v%d" % g)
                p("v_and_b32 v14, 0xffff0000, v%d" % x)
                p("v_and_b32 v15, 0xffff0000, v%d" % g)
                if k == 0:
                    p("v_mul_f32 v10, v12, v13")
                    p("v_mul_f32 v11, v14, v15")
                else:
                    p("v_fmac_f32 v10, v12, v13")
                    p("v_fmac_f32 v11, v14, v15")
            p("v_add_f32 v10, v10, v11")
            for sh in (8, 4, 2, 1):
                p("v_add_f32_dpp v10, v10, v10 row_ror:%d row_mask:0xf bank_mask:0xf" % sh)
            p("v_cmp_eq_u32 vcc, %d, v4" % ps)
            p("v_cndmask_b32 v9, v9, v10, vcc")
        p("v_mul_f32 v9, %s, v9" % f32(-math.log2(math.e)))
        p("v_exp_f32 v9, v9")
        p("v_add_f32 v9, 1.0, v9")
        p("v_rcp_f32 v9, v9")
        p("v_lshl_add_u32 v8, v4, 2, v5")
        p("v_lshlrev_b32 v8, 2, v8")
        p("v_mov_b32 v10, 0x%x" % OOB)
        p("v_cmp_gt_u32 vcc, 8, v4")
        p("v_cndmask_b32 v8, v10, v8, vcc")
        p("s_lshl_b32 s%d, s%d, 7" % (sT, sT))
        p("s_add_u32 s%d, s%d, %d" % (sT, sT, WS_G))
        p("buffer_store_dword v9, v8, %s, s%d offen%s" % (srd(sWS), sT, self.aux))
        self.signal(0, sRB, first=True)

    NW, NX, XB = 5, 4, 81920
    vWA, vWB, vX, vTR, vTR2, vXR = 8, 12, 16, 20, 24, 28
    vStA, vStB, vStB2, vG = 32, 33, 34, 36
    vPk = 40
    vFR = 96
    accA, accB = 128, 192

    def p1_setup(self):
        p = self.p
        T = sT
        p("s_lshr_b32 s%d, s%d, 1" % (T, sXCD))
        p("s_mul_i32 s%d, s%d, 30" % (T, T))
        p("s_add_u32 s%d, s%d, s%d" % (T, T, sJ))
        p("s_lshr_b32 s%d, s%d, 3" % (sCB, T))
        p("s_and_b32 s%d, s%d, 7" % (T, T))
        p("s_and_b32 s%d, s%d, 1" % (T + 1, sXCD))
        p("s_lshl_b32 s%d, s%d, 3" % (T + 1, T + 1))
        p("s_add_u32 s%d, s%d, s%d" % (sRB, T, T + 1))
        p("v_lshrrev_b32 v2, 4, v1")
        p("v_lshlrev_b32 v3, 2, v2")
        p("v_and_b32 v4, 15, v1")
        p("v_xor_b32 v4, v4, v3")
        p("s_lshl_b32 s%d, s%d, 4" % (T, sWAVE))
        p("v_add_u32 v5, s%d, v2" % T)
        p("v_mul_u32_u24 v6, 3840, v5")
        p("v_lshl_add_u32 v%d, v4, 4, v6" % self.vWA)
        for i in range(1, 4):
            p("v_add_u32 v%d, %d, v%d" % (self.vWA + i, i * (4 * 3840 - 1024), self.vWA))
        p("v_lshrrev_b32 v6, 3, v1")
        p("v_mul_u32_u24 v6, 1280, v6")
        p("v_and_b32 v7, 7, v1")
        p("v_xor_b32 v7, v7, v2")
        p("v_lshl_add_u32 v%d, v7, 4, v6" % self.vX)
        p("v_xor_b32 v%d, 64, v%d" % (self.vX + 1, self.vX))
        p("v_add_u32 v%d, %d, v%d" % (self.vX + 2, 2 * (8 * 1280 - 1024), self.vX))
        p("v_add_u32 v%d, %d, v%d" % (self.vX + 3, 3 * (8 * 1280 - 1024), self.vX + 1))
        p("v_add_u32 v%d, %d, v%d" % (self.vX + 1, 1 * (8 * 1280 - 1024), self.vX + 1))
        p("s_lshl_b32 s%d, s%d, 8" % (sOffWA, sCB))
        p("s_lshl_b32 s%d, s%d, 2" % (T + 2, sRB))
        p("s_add_u32 s%d, s%d, s%d" % (T + 2, T + 2, sWAVE))
        p("s_mul_i32 s%d, s%d, %d" % (sOffX, T + 2, 32 * 1280))
        self.issued = set()
        for s in range(4):
            p.add(self.dma_w(s))
            p.add(self.dma_x(s))
        p.add(self.dma_w(4))
        p("v_mul_u32_u24 v6, 3456, v5")
        p("v_lshl_add_u32 v%d, v4, 4, v6" % self.vWB)
        p("s_cmp_ge_u32 s%d, 12" % sCB)
        p("s_cselect_b32 s%d, 8, 16" % T)
        p("s_cselect_b32 s%d, 7, 8" % (T + 1))
        p("s_cselect_b32 s%d, 1536, 0" % (T + 3))
        p("s_cselect_b32 s%d, 0x%x, 0" % (T + 4, OOB))
        p("s_lshl_b32 s%d, s%d, s%d" % (sOffWB, sCB, T + 1))
        p("s_add_u32 s%d, s%d, s%d" % (sOffWB, sOffWB, T + 3))
        p("v_mov_b32 v7, 0x%x" % OOB)
        p("v_cmp_gt_u32 vcc, s%d, v4" % T)
        p("v_cndmask_b32 v%d, v7, v%d, vcc" % (self.vWB, self.vWB))
        for i in range(1, 4):
            p("v_add_u32 v%d, %d, v%d" % (self.vWB + i, i * (4 * 3456 - 1024), self.vWB))
        p("v_lshrrev_b32 v2, 5, v1")
        p("v_bfe_u32 v3, v1, 2, 2")
        p("v_lshl_add_u32 v4, v2, 3, v3")
        p("v_lshlrev_b32 v4, 8, v4")
        p("v_lshl_add_u32 v4, v3, 6, v4")
        p("v_bfe_u32 v5, v1, 4, 1")
        p("v_lshl_add_u32 v4, v5, 5, v4")
        p("v_and_b32 v5, 1, v1")
        p("v_lshl_add_u32 v4, v5, 4, v4")
        p("v_bfe_u32 v5, v1, 1, 1")
        p("v_lshl_add_u32 v%d, v5, 3, v4" % self.vTR)
        for ct in range(1, 4):
            p("v_xor_b32 v%d, %d, v%d" % (self.vTR + ct, ct * 64, self.vTR))
        for ct in range(4):
            p("v_add_u32 v%d, 0x10000, v%d" % (self.vTR2 + ct, self.vTR + ct))
        p("v_and_b32 v3, 31, v1")
        p("v_bfe_u32 v4, v1, 1, 3")
        p("v_xor_b32 v4, v4, v2")
        p("v_lshlrev_b32 v5, 7, v3")
        p("v_lshl_add_u32 v5, v4, 4, v5")
        p("s_add_u32 s%d, s%d, %d" % (T, sW4K, self.XB))
        p("v_add_u32 v%d, s%d, v5" % (self.vXR, T))
        for ks in range(1, 4):
            p("v_xor_b32 v%d, %d, v%d" % (self.vXR + ks, ks * 32, self.vXR))
        p("v_lshrrev_b32 v4, 3, v3")
        p("v_and_b32 v5, 7, v1")
        p("v_lshlrev_b32 v5, 4, v5")
        p("v_lshl_add_u32 v5, v2, 7, v5")
        p("s_mov_b32 s%d, %d" % (T, PHO))
        p("v_mad_u32_u24 v%d, v4, s%d, v5" % (self.vStB, T))
        p("v_or_b32 v%d, s%d, v%d" % (self.vStB2, T + 4, self.vStB))
        p("s_mov_b32 s%d, %d" % (T, PQK))
        p("v_mad_u32_u24 v%d, v4, s%d, v5" % (self.vStA, T))
        p("v_and_b32 v4, 19, v1")
        p("v_bfe_u32 v5, v1, 2, 1")
        p("v_lshl_add_u32 v4, v5, 3, v4")
        p("v_bfe_u32 v5, v1, 3, 1")
        p("v_lshl_add_u32 v4, v5, 2, v4")
        p("v_mul_u32_u24 v5, 10240, v2")
        p("v_lshl_add_u32 v4, v4, 4, v5")
        p("s_cmp_ge_u32 s%d, 10" % sCB)
        p("s_cselect_b64 vcc, -1, 0")
        p("v_cndmask_b32 v%d, v%d, v4, vcc" % (self.vStA, self.vStA))
        self.csel(T, 40960, 4 * PQK)
        self.csel(T + 1, WS_V - 10 * 2048, WS_QK)
        self.csel(T + 3, 20480, 256)
        p("s_mul_i32 s%d, s%d, s%d" % (sStA0, T + 2, T))
        p("s_add_u32 s%d, s%d, s%d" % (sStA0, sStA0, T + 1))
        p("s_lshl_b32 s%d, s%d, 11" % (T, sCB))
        p("s_add_u32 s%d, s%d, s%d" % (sStA0, sStA0, T))
        p("s_add_u32 s%d, s%d, s%d" % (sStA1, sStA0, T + 3))
        p("s_mul_i32 s%d, s%d, %d" % (sStB, T + 2, 4 * PHO))
        p("s_lshl_b32 s%d, s%d, 3" % (T, sOffWB))
        p("s_add_u32 s%d, s%d, s%d" % (sStB, sStB, T))
        p("s_add_u32 s%d, s%d, %d" % (sStB, sStB, WS_HO))
        p("s_cmp_lt_u32 s%d, 5" % sCB)
        p("s_cselect_b32 s%d, %s, 1.0" % (sScale, f32(QSCALE)))
        p("s_mov_b32 s%d, s%d" % (sScale + 1, sScale))

    def dma_w(self, s):
        a = s < 10
        base, off, rs, step = (self.vWA, sOffWA, sWA, 64 * 3840) if a else (self.vWB, sOffWB, sWB, 64 * 3456)
        g = []
        for i in range(4):
            x = []
            if i == 0:
                x.append(Ins("s_add_u32 m0, s%d, %d" % (sW4K, (s % self.NW) * 16384)))
            x.append(Ins("buffer_load_dwordx4 v%d, %s, s%d offen offset:%d lds" % (base + i, srd(rs), off, 1024 * i),
                         tag="W%d" % s))
            if i == 3:
                x.append(Ins("s_add_u32 s%d, s%d, %d" % (off, off, step)))
            g.append(x)
        return g

    def dma_x(self, s):
        g = []
        for i in range(4):
            x = []
            if i == 0:
                x.append(Ins("s_add_u32 m0, s%d, %d" % (sW4K, self.XB + (s % self.NX) * 16384)))
            x.append(Ins("buffer_load_dwordx4 v%d, %s, s%d offen offset:%d lds" % (self.vX + i, srd(sX), sOffX, 1024 * i),
                         tag="X%d" % s))
            if i == 3:
                x.append(Ins("s_add_u32 s%d, s%d, 128" % (sOffX, sOffX)))
            g.append(x)
        return g

    def p1_reads(self, n):
        s, ks, ct = n // 16, (n // 4) % 4, n % 4
        slot = s % self.NW
        base = self.vTR + ct if slot < 4 else self.vTR2 + ct
        off = (slot % 4) * 16384 + ks * 4096
        fr = self.vFR + 4 * (n % 8)
        r = []
        if ct == 0 and s < 10:
            r.append(Ins("ds_read_b128 %s, v%d offset:%d" % (ar(16 * s + 4 * ks, 4), self.vXR + ks, (s % self.NX) * 16384)))
        for i in range(2):
            r.append(Ins("ds_read_b64_tr_b16 %s, v%d offset:%d" % (vr(fr + 2 * i, 2), base, off + 1024 * i)))
        return r

    def p1_mfma(self, n, vrole):
        s, ks, ct = n // 16, (n // 4) % 4, n % 4
        acc = (self.accA if s < 10 else self.accB) + 16 * ct
        w = vr(self.vFR + 4 * (n % 8), 4)
        x = ar(16 * (s % 10) + 4 * ks, 4)
        c = "0" if (s % 10 == 0 and ks == 0) else vr(acc, 16)
        a, b = (x, w) if (vrole and s < 10) else (w, x)
        return Ins("v_mfma_f32_32x32x16_bf16 %s, %s, %s, %s" % (vr(acc, 16), a, b, c))

    def epi_a(self):
        g = []
        for ct in range(4):
            for t in range(2):
                a = self.accA + 16 * ct + 8 * t
                pk = self.vPk + 4 * ((2 * ct + t) % 4)
                for u in range(4):
                    g.append([Ins("v_pk_mul_f32 %s, %s, s[%d:%d]" % (vr(a + 2 * u, 2), vr(a + 2 * u, 2), sScale, sScale + 1))])
                for u in range(4):
                    g.append([Ins("v_cvt_pk_bf16_f32 v%d, v%d, v%d" % (pk + u, a + 2 * u, a + 2 * u + 1))])
                g.append([Ins("buffer_store_dwordx4 %s, v%d, %s, s%d offen offset:%d%s" %
                              (vr(pk, 4), self.vStA, srd(sWS), sStA1 if t else sStA0, 512 * ct, self.aux), tag="stA")])
        return g

    def epi_b(self):
        p = self.p
        for ct in range(4):
            for t in range(2):
                a = self.accB + 16 * ct + 8 * t
                pk = self.vPk + 4 * ((2 * ct + t) % 4)
                for u in range(4):
                    p("v_pk_mul_f32 %s, %s, %s op_sel_hi:[1,0]" % (vr(a + 2 * u, 2), vr(a + 2 * u, 2), vr(self.vG, 2)))
                for u in range(4):
                    p("v_cvt_pk_bf16_f32 v%d, v%d, v%d" % (pk + u, a + 2 * u, a + 2 * u + 1))
                for u in range(4):
                    p("v_pk_max_i16 v%d, v%d, 0" % (pk + u, pk + u))
                p("buffer_store_dwordx4 %s, v%d, %s, s%d offen offset:%d%s" %
                  (vr(pk, 4), self.vStB if ct < 2 else self.vStB2, srd(sWS), sStB, 512 * ct + 256 * t, self.aux))

    def p1_range(self, n0, n1, vrole, extra):
        p = self.p
        LOOK = 4
        for n in range(n0, n1):
            s, m = n // 16, n % 16
            p.add(self.p1_mfma(n, vrole))
            if m == 16 - LOOK and s + 1 < 20:
                p.wait_tag("W%d" % (s + 1), "X%d" % (s + 1))
                p("s_barrier")
            if n + LOOK < 320:
                p.add(self.p1_reads(n + LOOK))
            for g in extra.get(n, []):
                p.add(g)

    def p1_main(self):
        p = self.p
        extra = {}

        def put(n, g):
            extra.setdefault(n, []).append(g)

        for s in range(1, 20):
            n0 = 16 * s - 4
            gs = []
            if 4 < s + 3 < 20:
                gs += self.dma_w(s + 3)
            if 3 < s + 3 < 10:
                gs += self.dma_x(s + 3)
            for k, g in enumerate(gs):
                put(n0 + 1 + (k * 16) // len(gs), g)
        ea = self.epi_a()
        for k, g in enumerate(ea):
            put(164 + k // 2, g)
        p.wait_tag("W0", "X0")
        p("s_barrier")
        for n in range(4):
            p.add(self.p1_reads(n))
        lv, lb = self.lab("vrole"), self.lab("partb")
        p("s_cmp_ge_u32 s%d, 10" % sCB)
        p("s_cbranch_scc1 %s" % lv)
        mark = len(p.items)
        self.p1_range(0, 160, False, extra)
        p(lb + ":")
        keep = self.p
        alt = Prog()
        alt.items = list(keep.items[:mark])
        alt(lv + ":")
        self.p = alt
        self.p1_range(0, 160, True, extra)
        alt("s_branch %s" % lb)
        txt = alt.finalize()
        self.tail.raw(txt[txt.index(lv + ":"):])
        self.p = keep
        self.stamp(1)
        self.p1_range(160, 320, False, extra)
        self.stamp(2)
        self.signal(0, sRB, first=True)
        self.wait_flag(0, sRB, 16)
        p("v_and_b32 v2, 31, v1")
        p("v_lshlrev_b32 v2, 2, v2")
        p("s_lshl_b32 s%d, s%d, 2" % (sT, sRB))
        p("s_add_u32 s%d, s%d, s%d" % (sT, sT, sWAVE))
        p("s_lshl_b32 s%d, s%d, 7" % (sT, sT))
        p("s_add_u32 s%d, s%d, %d" % (sT, sT, WS_G))
        p("buffer_load_dword v%d, v2, %s, s%d offen%s" % (self.vG, srd(sWS), sT, self.aux))
        p("v_sub_f32 v%d, 1.0, v%d" % (self.vG, self.vG))
        self.epi_b()
        self.signal(1, sRB)

    KB, VB = 0, 30720
    vKD, vVD = 8, 12
    vKA, vK2, vVA, vVB = 16, 17, 18, 19
    vQO, vG2 = 20, 21
    rQA, rQB, rQ2A, rQ2B = 24, 28, 32, 34
    rK1, rK2, rV0, rV1 = 36, 40, 44, 48
    rP, rE = 52, 60
    rS = 72
    rO = 104
    rFar, rDiag = 136, 152

    def p2(self):
        p = self.p
        T = sT
        p("s_and_b32 s%d, s%d, 1" % (T, sXCD))
        p("s_lshl_b32 s%d, s%d, 3" % (T, T))
        p("s_and_b32 s%d, s%d, 7" % (T + 1, sJ))
        p("s_add_u32 s%d, s%d, s%d" % (sRB2, T, T + 1))
        p("s_lshr_b32 s%d, s%d, 1" % (T, sXCD))
        p("s_lshl_b32 s%d, s%d, 2" % (T, T))
        p("s_lshr_b32 s%d, s%d, 3" % (T + 1, sJ))
        p("s_add_u32 s%d, s%d, s%d" % (sHP, T, T + 1))
        for b in range(3):
            p("s_sub_u32 s%d, s%d, %d" % (T + 5, sRB2, b))
            p("s_max_i32 s%d, s%d, 0" % (T + 5, T + 5))
            self.wait_flag(0, T + 5, 16)
        p("s_barrier")
        self.stamp(3)
        p("v_lshlrev_b32 v%d, 4, v1" % self.vKD)
        p("v_mov_b32 v%d, v%d" % (self.vVD, self.vKD))
        for i in range(1, 4):
            p("v_add_u32 v%d, %d, v%d" % (self.vKD + i, i * (PQK - 640), self.vKD))
            p("v_add_u32 v%d, %d, v%d" % (self.vVD + i, i * (10240 - 656), self.vKD))
        p("s_mul_i32 s%d, s%d, 640" % (T, sHP))
        p("s_lshl_b32 s%d, s%d, 2" % (T + 1, sRB2))
        p("s_add_u32 s%d, s%d, s%d" % (T + 1, T + 1, sWAVE))
        p("s_mul_i32 s%d, s%d, %d" % (T + 2, T + 1, 4 * PQK))
        p("s_add_u32 s%d, s%d, s%d" % (T + 2, T + 2, T))
        p("s_add_u32 s%d, s%d, %d" % (T + 2, T + 2, WS_QK))
        p("s_mul_i32 s%d, s%d, %d" % (T + 3, T + 1, 40960))
        p("s_add_u32 s%d, s%d, s%d" % (T + 3, T + 3, T))
        p("s_add_u32 s%d, s%d, %d" % (T + 3, T + 3, WS_V))
        p("s_mul_i32 s%d, s%d, %d" % (T + 6, sWAVE, 4 * 640))
        p("s_mul_i32 s%d, s%d, %d" % (T + 7, sWAVE, 4 * 656))
        p("s_mov_b32 exec_hi, 0xff")
        for b in range(3):
            back = 2 - b
            p("s_sub_u32 s%d, s%d, %d" % (T + 4, T + 2, back * 16 * PQK - 80 * 128))
            p("s_sub_u32 s%d, s%d, %d" % (T + 5, T + 3, back * 163840))
            if back:
                p("s_cmp_lt_u32 s%d, %d" % (sRB2, back))
                p("s_cselect_b32 s%d, 0x%x, s%d" % (T + 4, OOB, T + 4))
                p("s_cselect_b32 s%d, 0x%x, s%d" % (T + 5, OOB, T + 5))
            p("s_add_u32 m0, s%d, %d" % (T + 6, self.KB + b * 16 * 640))
            for i in range(4):
                p("buffer_load_dwordx4 v%d, %s, s%d offen offset:%d%s lds" %
                  (self.vKD + i, srd(sWS), T + 4, 640 * i, self.aux), tag="KV")
            p("s_add_u32 m0, s%d, %d" % (T + 7, self.VB + b * 16 * 656))
            for i in range(4):
                p("buffer_load_dwordx4 v%d, %s, s%d offen offset:%d%s lds" %
                  (self.vVD + i, srd(sWS), T + 5, 656 * i, self.aux), tag="KV")
        p("s_mov_b32 exec_hi, -1")
        p("v_lshrrev_b32 v2, 5, v1")
        p("v_and_b32 v3, 31, v1")
        p("v_lshrrev_b32 v4, 3, v3")
        p("v_and_b32 v5, 7, v1")
        p("v_lshlrev_b32 v5, 4, v5")
        p("s_mov_b32 s%d, %d" % (T + 4, PQK))
        p("v_mad_u32_u24 v6, v4, s%d, v5" % (T + 4))
        p("v_lshl_add_u32 v7, v2, 7, v6")
        p("v_lshl_add_u32 v6, v2, 3, v6")
        p("buffer_load_dwordx4 %s, v7, %s, s%d offen%s" % (vr(self.rQA, 4), srd(sWS), T + 2, self.aux))
        p("buffer_load_dwordx4 %s, v7, %s, s%d offen offset:384%s" % (vr(self.rQB, 4), srd(sWS), T + 2, self.aux))
        p("buffer_load_dwordx2 %s, v6, %s, s%d offen offset:256%s" % (vr(self.rQ2A, 2), srd(sWS), T + 2, self.aux))
        p("v_lshlrev_b32 v6, 2, v3")
        p("s_lshl_b32 s%d, s%d, 7" % (T + 4, T + 1))
        p("s_add_u32 s%d, s%d, %d" % (T + 4, T + 4, WS_G))
        p("buffer_load_dword v%d, v6, %s, s%d offen%s" % (self.vG2, srd(sWS), T + 4, self.aux))
        p("s_mov_b32 s%d, %d" % (T + 4, PHO))
        p("v_mad_u32_u24 v6, v4, s%d, v5" % (T + 4))
        p("v_lshl_add_u32 v%d, v2, 7, v6" % self.vQO)
        p("s_mul_i32 s%d, s%d, %d" % (sStB, T + 1, 4 * PHO))
        p("s_add_u32 s%d, s%d, s%d" % (sStB, sStB, T))
        p("s_add_u32 s%d, s%d, %d" % (sStB, sStB, WS_HO + 216 * 128))
        p("v_mul_u32_u24 v6, 640, v4")
        p("v_add3_u32 v6, v6, v5, s%d" % (T + 6))
        p("v_lshl_add_u32 v%d, v2, 7, v6" % self.vKA)
        p("v_lshl_add_u32 v%d, v2, 3, v6" % self.vK2)
        p("v_and_b32 v6, 3, v1")
        p("v_bfe_u32 v7, v1, 2, 1")
        p("v_lshl_add_u32 v7, v7, 3, v6")
        p("v_bfe_u32 v4, v1, 3, 1")
        p("v_lshl_add_u32 v7, v4, 2, v7")
        p("v_add_u32 v4, 24, v7")
        p("v_add_u32 v5, 16, v6")
        p("v_add_u32 v6, 20, v6")
        p("v_cmp_gt_u32 vcc, 16, v3")
        p("v_cndmask_b32 v7, v5, v7, vcc")
        p("v_cndmask_b32 v4, v6, v4, vcc")
        p("v_cmp_gt_u32 vcc, 24, v3")
        p("v_cndmask_b32 v7, 40, v7, vcc")
        p("v_cndmask_b32 v4, 40, v4, vcc")
        p("v_mul_u32_u24 v5, 656, v2")
        p("s_add_u32 s%d, s%d, %d" % (T + 7, T + 7, self.VB))
        p("v_add_u32 v5, s%d, v5" % (T + 7))
        p("v_lshl_add_u32 v%d, v7, 4, v5" % self.vVA)
        p("v_lshl_add_u32 v%d, v4, 4, v5" % self.vVB)
        p("v_lshrrev_b32 v4, 4, v1")
        p("v_add_u32 v4, s%d, v4" % sRB2)
        p("v_mov_b32 v5, 0x3f803f80")
        p("v_cmp_le_u32 vcc, 2, v4")
        p("v_cndmask_b32 v%d, 0, v5, vcc" % self.rE)
        for k in range(1, 4):
            p("v_mov_b32 v%d, v%d" % (self.rE + k, self.rE))
        p("v_mul_u32_u24 v4, 656, v1")
        p("s_mov_b32 exec_hi, 0xffff")
        p("ds_write_b128 v4, %s offset:%d" % (vr(self.rE, 4), self.VB + 640), tag="ones")
        p("s_mov_b32 exec_hi, -1")
        big = 2.0 ** 100
        p("v_lshlrev_b32 v4, 2, v2")
        p("v_sub_u32 v4, v3, v4")
        p("v_cvt_f32_i32 v4, v4")
        p("v_add_f32 v4, 0.5, v4")
        p("v_mul_f32 v4, %s, v4" % f32(big))
        for r in range(16):
            c = 8 * (r // 4) + r % 4
            p("v_add_f32 v5, %s, v4" % f32(-c * big))
            p("v_min_f32 v%d, 0, v5" % (self.rDiag + r))
            p("v_min_f32 v%d, 0, -v5" % (self.rFar + r))
        p("v_cmp_eq_u32 vcc, 0, v2")
        for k in range(2):
            p("v_cndmask_b32 v%d, v%d, 0, vcc" % (self.rQ2B + k, self.rQ2A + k))
            p("v_cndmask_b32 v%d, 0, v%d, vcc" % (self.rQ2A + k, self.rQ2A + k))
        p("s_waitcnt vmcnt(0) lgkmcnt(0)")
        p("s_barrier")
        self.stamp(4)
        self.p2_main()
        self.p2_epi()
        self.stamp(5)
        self.signal(2, sRB2)

    def rdK1(self, u):
        return "ds_read_b128 %s, v%d offset:%d" % (vr(self.rK1, 4), self.vKA, self.KB + (u // 2) * 2560 + 384 * (u % 2))

    def rdK2(self, i):
        return "ds_read_b64 %s, v%d offset:%d" % (vr(self.rK2, 2), self.vK2, self.KB + i * 2560 + 256)

    def rdV(self, u, t):
        return "ds_read_b128 %s, v%d offset:%d" % (vr(self.rV1 if t else self.rV0, 4), self.vVB if u % 2 else self.vVA,
                                                    (4 * (u // 2) + 2 * t) * 656)

    def qk1(self, u):
        i = u // 2
        c = vr(self.rFar, 16) if i == 0 else vr(self.rDiag, 16) if i == 8 else "0"
        return "v_mfma_f32_32x32x16_bf16 %s, %s, %s, %s" % (
            vr(self.rS + 16 * (u % 2), 16), vr(self.rK1, 4), vr(self.rQB if u % 2 else self.rQA, 4), c)

    def qk2(self, u):
        s = vr(self.rS + 16 * (u % 2), 16)
        return "v_mfma_f32_32x32x8_bf16 %s, %s, %s, %s" % (s, vr(self.rK2, 2), vr(self.rQ2B if u % 2 else self.rQ2A, 2), s)

    def pv(self, u, t):
        o = vr(self.rO + 16 * (u % 2), 16)
        return "v_mfma_f32_32x32x16_bf16 %s, %s, %s, %s" % (
            o, vr(self.rV1 if t else self.rV0, 4), vr(self.rP + 4 * t, 4), "0" if (u < 2 and t == 0) else o)

    def p2_main(self):
        p = self.p
        NU = 18
        ex = lambda u, r: "v_exp_f32 v%d, v%d" % (self.rE + r % 8, self.rS + 16 * (u % 2) + r)
        cv = lambda k: "v_cvt_pk_bf16_f32 v%d, v%d, v%d" % (self.rP + k, self.rE + (2 * k) % 8, self.rE + (2 * k + 1) % 8)
        p(self.rdK1(0))
        p(self.rdK2(0))
        p(self.rdV(0, 0))
        p(self.qk1(0))
        p(self.rdK1(1))
        p(self.qk2(0))
        for u in range(NU):
            nx = u + 1 < NU
            if nx:
                p(self.qk1(u + 1))
                if u + 2 < NU:
                    p(self.rdK1(u + 2))
            if u:
                p(cv(6)); p(cv(7))
            for r in range(0, 4):
                p(ex(u, r))
            if u:
                p(self.pv(u - 1, 1))
            p(self.rdV(u, 1))
            p(cv(0)); p(cv(1))
            for r in range(4, 8):
                p(ex(u, r))
            if nx:
                p(self.qk2(u + 1))
                if (u + 1) % 2 == 1 and u + 2 < NU:
                    p(self.rdK2((u + 2) // 2))
            p(cv(2)); p(cv(3))
            for r in range(8, 12):
                p(ex(u, r))
            p(self.pv(u, 0))
            if nx:
                p(self.rdV(u + 1, 0))
            p(cv(4)); p(cv(5))
            for r in range(12, 16):
                p(ex(u, r))
        p(cv(6)); p(cv(7))
        p(self.pv(NU - 1, 1))

    def p2_epi(self):
        p = self.p
        slow, back = self.lab("slow"), self.lab("norm")
        lA, lB = self.rO + 12, self.rO + 16 + 12
        p("v_max_f32 v2, v%d, v%d" % (lA, lB))
        p("v_min_f32 v3, v%d, v%d" % (lA, lB))
        p("v_mov_b32 v4, 0")
        for hd in range(2):
            for k in range(0, 12):
                p("v_fma_f32 v4, v%d, 0, v4" % (self.rO + 16 * hd + k))
        p("v_fma_f32 v4, v%d, 0, v4" % lA)
        p("v_fma_f32 v4, v%d, 0, v4" % lB)
        p("v_add_f32 v2, v2, v4")
        p("v_cmp_nge_f32 vcc, %s, v2" % f32(2.0 ** 60))
        p("s_mov_b64 s[%d:%d], vcc" % (sT, sT + 1))
        p("v_cmp_nle_f32 vcc, %s, v3" % f32(2.0 ** -60))
        p("s_or_b64 vcc, vcc, s[%d:%d]" % (sT, sT + 1))
        if self.force_slow:
            p("s_branch %s" % slow)
        else:
            p("s_cbranch_vccnz %s" % slow)
        p(back + ":")
        for hd in range(2):
            o = self.rO + 16 * hd
            p("v_rcp_f32 v2, v%d" % (o + 12))
            p("v_mul_f32 v2, v%d, v2" % self.vG2)
            for k in range(6):
                p("v_pk_mul_f32 %s, %s, v[2:3] op_sel_hi:[1,0]" % (vr(o + 2 * k, 2), vr(o + 2 * k, 2)))
            for k in range(4):
                p("v_cvt_pk_bf16_f32 v%d, v%d, v%d" % (self.rS + 4 * hd + k, o + 2 * k, o + 2 * k + 1))
            for k in range(2):
                p("v_cvt_pk_bf16_f32 v%d, v%d, v%d" % (self.rS + 8 + 2 * hd + k, o + 8 + 2 * k, o + 9 + 2 * k))
            p("buffer_store_dwordx4 %s, v%d, %s, s%d offen offset:%d%s" %
              (vr(self.rS + 4 * hd, 4), self.vQO, srd(sWS), sStB, 384 * hd, self.aux))
        p("s_mov_b32 exec_hi, 0")
        p("buffer_store_dwordx4 %s, v%d, %s, s%d offen offset:256%s" %
          (vr(self.rS + 8, 4), self.vQO, srd(sWS), sStB, self.aux))
        p("s_mov_b32 exec_hi, -1")
        self.p2_slow(slow, back)

    def p2_slow(self, slow, back):
        q = Prog()
        T = sT
        S, P = self.rS, self.rP
        aK1, aK2, aV = 4, 5, 6
        vM = 7
        q(slow + ":")
        q("s_nop 15")
        q("s_lshl_b32 s%d, s%d, 2" % (T, sRB2))
        q("s_add_u32 s%d, s%d, s%d" % (T, T, sWAVE))
        q("s_sub_u32 s%d, 8, s%d" % (T, T))
        q("s_max_i32 s%d, s%d, 0" % (T, T))
        for hd in range(2):
            O = self.rO + 16 * hd
            for ps in range(2):
                lp, nm, nm2 = self.lab("sl"), self.lab("nm"), self.lab("nm2")
                q("s_mov_b32 s%d, s%d" % (T + 1, T))
                q("s_mul_i32 s%d, s%d, 2560" % (T + 2, T))
                q("s_mul_i32 s%d, s%d, 2624" % (T + 3, T))
                q("v_add_u32 v%d, s%d, v%d" % (aK1, T + 2, self.vKA))
                q("v_add_u32 v%d, s%d, v%d" % (aK2, T + 2, self.vK2))
                q("v_add_u32 v%d, s%d, v%d" % (aV, T + 3, self.vVB if hd else self.vVA))
                if ps == 0:
                    q("v_mov_b32 v%d, 0xff800000" % vM)
                else:
                    for r in range(16):
                        q("v_mov_b32 v%d, 0" % (O + r))
                q(lp + ":")
                q("ds_read_b128 %s, v%d offset:%d" % (vr(self.rK1, 4), aK1, self.KB + 384 * hd))
                q("ds_read_b64 %s, v%d offset:%d" % (vr(self.rK2, 2), aK2, self.KB + 256))
                q("ds_read_b128 %s, v%d" % (vr(self.rV0, 4), aV))
                q("ds_read_b128 %s, v%d offset:%d" % (vr(self.rV1, 4), aV, 2 * 656))
                q("s_waitcnt lgkmcnt(0)")
                q("v_mfma_f32_32x32x16_bf16 %s, %s, %s, 0" % (vr(S, 16), vr(self.rK1, 4), vr(self.rQB if hd else self.rQA, 4)))
                q("v_mfma_f32_32x32x8_bf16 %s, %s, %s, %s" %
                  (vr(S, 16), vr(self.rK2, 2), vr(self.rQ2B if hd else self.rQ2A, 2), vr(S, 16)))
                q("s_nop 15")
                q("v_mov_b32 v2, 0xff800000")
                for which, reg, lab in ((0, self.rFar, nm), (8, self.rDiag, nm2)):
                    q("s_cmp_lg_u32 s%d, %d" % (T + 1, which))
                    q("s_cbranch_scc1 %s" % lab)
                    for r in range(16):
                        q("v_cmp_eq_f32 vcc, 0, v%d" % (reg + r))
                        q("v_cndmask_b32 v%d, v2, v%d, vcc" % (S + r, S + r))
                    q(lab + ":")
                if ps == 0:
                    for r in range(0, 16, 2):
                        q("v_max3_f32 v%d, v%d, v%d, v%d" % (vM, S + r, S + r + 1, vM))
                else:
                    for r in range(16):
                        q("v_sub_f32 v%d, v%d, v%d" % (S + r, S + r, vM))
                        q("v_exp_f32 v%d, v%d" % (S + r, S + r))
                    for k in range(8):
                        q("v_cvt_pk_bf16_f32 v%d, v%d, v%d" % (P + k, S + 2 * k, S + 2 * k + 1))
                    for t in range(2):
                        q("v_mfma_f32_32x32x16_bf16 %s, %s, %s, %s" %
                          (vr(O, 16), vr(self.rV1 if t else self.rV0, 4), vr(P + 4 * t, 4), vr(O, 16)))
                q("v_add_u32 v%d, 2560, v%d" % (aK1, aK1))
                q("v_add_u32 v%d, 2560, v%d" % (aK2, aK2))
                q("v_add_u32 v%d, 2624, v%d" % (aV, aV))
                q("s_add_u32 s%d, s%d, 1" % (T + 1, T + 1))
                q("s_cmp_lt_u32 s%d, 9" % (T + 1))
                q("s_cbranch_scc1 %s" % lp)
                if ps == 0:
                    q("v_mov_b32 v2, v%d" % vM)
                    q("v_permlane32_swap_b32 v2, v%d" % vM)
                    q("v_max_f32 v%d, v2, v%d" % (vM, vM))
        q("s_nop 15")
        q("s_branch %s" % back)
        self.tail.raw(q.finalize())

    NS3, RED = 12, 98304
    vD3, vT3, vA3, vRW, vRR, vO3 = 8, 12, 14, 18, 22, 24
    rW3 = 32
    rSum = 48
    acc3 = 160
    rAct = 0
    rWO = 128
    NA = 9

    def p3(self, done):
        p = self.p
        T = sT
        p("s_cmp_ge_u32 s%d, 30" % sJ)
        p("s_cbranch_scc1 %s" % done)
        p("s_mul_i32 s%d, s%d, 52" % (T, sJ))
        p("s_lshr_b32 s%d, s%d, 8" % (T, T))
        p("s_mul_i32 s%d, s%d, 5" % (T + 1, T))
        p("s_sub_u32 s%d, s%d, s%d" % (T + 1, sJ, T + 1))
        p("s_and_b32 s%d, s%d, 3" % (T + 2, sXCD))
        p("s_mul_i32 s%d, s%d, 6" % (T + 2, T + 2))
        p("s_add_u32 s%d, s%d, s%d" % (sMB, T + 2, T))
        p("s_lshr_b32 s%d, s%d, 2" % (T + 2, sXCD))
        p("s_mul_i32 s%d, s%d, 5" % (T + 2, T + 2))
        p("s_add_u32 s%d, s%d, s%d" % (sNB, T + 2, T + 1))
        sW2o, sWOo, sA0, sA1, sA2, sL3, sRlo, sRhi = 71, 72, 73, 74, 75, 76, 77, 78
        p("v_lshrrev_b32 v2, 3, v1")
        p("v_bfe_u32 v3, v1, 4, 1")
        p("v_lshlrev_b32 v3, 2, v3")
        p("v_and_b32 v4, 7, v1")
        p("v_xor_b32 v3, v3, v4")
        p("v_mul_u32_u24 v5, 1280, v2")
        p("v_lshl_add_u32 v%d, v3, 4, v5" % self.vD3)
        p("v_add_u32 v%d, %d, v%d" % (self.vD3 + 1, 8 * 1280 - 1024, self.vD3))
        p("s_lshl_b32 s%d, s%d, 7" % (T, sNB))
        p("s_mul_i32 s%d, s%d, %d" % (sW2o, sWAVE, 27 * 16 * 1280))
        p("s_add_u32 s%d, s%d, s%d" % (sW2o, sW2o, T))
        p("s_mul_i32 s%d, s%d, %d" % (sWOo, sWAVE, 10 * 16 * 1280))
        p("s_add_u32 s%d, s%d, s%d" % (sWOo, sWOo, T))
        p("s_mul_i32 s%d, s%d, %d" % (sL3, sWAVE, self.NS3 * 2048))
        p("s_barrier")

        def dma(k):
            rs, off = (sW2, sW2o) if k < 27 else (sWO, sWOo)
            return [[Ins("s_add_u32 m0, s%d, %d" % (sL3, (k % self.NS3) * 2048)),
                     Ins("buffer_load_dwordx4 v%d, %s, s%d offen lds" % (self.vD3, srd(rs), off), tag="w%d" % k)],
                    [Ins("buffer_load_dwordx4 v%d, %s, s%d offen offset:1024 lds" % (self.vD3 + 1, srd(rs), off), tag="w%d" % k),
                     Ins("s_add_u32 s%d, s%d, %d" % (off, off, 16 * 1280))]]

        for k in range(self.NS3):
            p.add(dma(k))
        p("s_mul_i32 s%d, s%d, 11" % (T + 1, sMB))
        p("s_add_u32 s%d, s%d, s%d" % (T + 2, T + 1, sWAVE))
        p("s_mul_i32 s%d, s%d, %d" % (T + 2, T + 2, 8 * 1280))
        p("s_add_u32 s%d, s%d, s%d" % (T + 2, T + 2, T))
        p("v_lshl_add_u32 v5, v4, 4, v5")
        p("v_add_u32 v%d, s%d, v5" % (self.vO3, T + 2))
        p("v_add_u32 v%d, %d, v%d" % (self.vO3 + 1, 32 * 1280, self.vO3))
        p("s_cmp_eq_u32 s%d, 3" % sWAVE)
        self.csel(T + 2, OOB, 64 * 1280)
        p("v_add_u32 v%d, s%d, v%d" % (self.vO3 + 2, T + 2, self.vO3))
        p("v_lshlrev_b32 v5, 1, v4")
        p("v_xor_b32 v5, v5, v2")
        p("v_lshlrev_b32 v5, 4, v5")
        p("v_lshl_add_u32 v5, v2, 8, v5")
        p("s_lshl_b32 s%d, s%d, 11" % (T + 2, sWAVE))
        p("s_add_u32 s%d, s%d, %d" % (T + 2, T + 2, self.RED))
        p("v_add_u32 v%d, s%d, v5" % (self.vRR, T + 2))
        p("v_xor_b32 v%d, 16, v%d" % (self.vRR + 1, self.vRR))
        p("v_lshrrev_b32 v2, 5, v1")
        p("v_bfe_u32 v3, v1, 2, 2")
        p("v_lshl_add_u32 v5, v2, 3, v3")
        p("v_lshlrev_b32 v5, 7, v5")
        p("v_bfe_u32 v6, v1, 3, 1")
        p("v_lshl_add_u32 v5, v6, 6, v5")
        p("v_bfe_u32 v6, v1, 4, 1")
        p("v_lshl_add_u32 v5, v6, 5, v5")
        p("v_and_b32 v6, 1, v1")
        p("v_lshl_add_u32 v5, v6, 4, v5")
        p("v_bfe_u32 v6, v1, 1, 1")
        p("v_lshl_add_u32 v5, v6, 3, v5")
        p("v_add_u32 v%d, s%d, v5" % (self.vT3, sL3))
        p("v_xor_b32 v%d, 64, v%d" % (self.vT3 + 1, self.vT3))
        p("v_and_b32 v3, 31, v1")
        p("v_lshlrev_b32 v5, 1, v2")
        p("v_xor_b32 v5, v5, v4")
        p("v_lshlrev_b32 v5, 4, v5")
        p("v_lshl_add_u32 v5, v3, 8, v5")
        p("s_lshl_b32 s%d, s%d, 13" % (T + 2, sWAVE))
        p("s_add_u32 s%d, s%d, %d" % (T + 2, T + 2, self.RED))
        p("v_add_u32 v%d, s%d, v5" % (self.vRW, T + 2))
        for k, x in ((1, 16), (2, 64), (3, 80)):
            p("v_xor_b32 v%d, %d, v%d" % (self.vRW + k, x, self.vRW))
        p("v_lshrrev_b32 v5, 3, v3")
        p("v_lshlrev_b32 v6, 4, v4")
        p("v_lshl_add_u32 v6, v2, 7, v6")
        p("s_mov_b32 s%d, %d" % (T + 2, PHO))
        p("v_mad_u32_u24 v6, v5, s%d, v6" % (T + 2))
        p("s_mul_i32 s%d, s%d, %d" % (T + 2, T + 1, PHO))
        p("s_add_u32 s%d, s%d, %d" % (T + 2, T + 2, WS_HO))
        p("v_add_u32 v%d, s%d, v6" % (self.vA3, T + 2))
        p("v_add_u32 v%d, %d, v%d" % (self.vA3 + 1, 4 * PHO, self.vA3))
        p("v_add_u32 v%d, %d, v%d" % (self.vA3 + 2, 8 * PHO, self.vA3))
        p("v_mov_b32 v6, 0x%x" % OOB)
        p("v_cmp_gt_u32 vcc, 3, v5")
        p("v_cndmask_b32 v%d, v6, v%d, vcc" % (self.vA3 + 2, self.vA3 + 2))
        p("s_mul_i32 s%d, s%d, %d" % (sA0, sWAVE, 27 * 256))
        p("s_add_u32 s%d, s%d, 4096" % (sA1, sA0))
        p("s_mul_i32 s%d, s%d, %d" % (sA2, sWAVE, 10 * 256))
        p("s_add_u32 s%d, s%d, %d" % (sA2, sA2, 216 * 128))
        p("s_lshr_b32 s%d, s%d, 4" % (sRlo, T + 1))
        p("s_add_u32 s%d, s%d, 10" % (sRhi, T + 1))
        p("s_lshr_b32 s%d, s%d, 4" % (sRhi, sRhi))
        p("s_min_u32 s%d, s%d, 15" % (sRhi, sRhi))
        self.wait_flag(1, sRlo, 15)
        self.wait_flag(1, sRhi, 15)
        self.stamp(6)

        frs = [(k, rt) for k in range(27) for rt in range(3)] + [(27 + k, rt) for rt in range(3) for k in range(10)]
        NR = 3 * self.NA

        def act(f):
            k, rt = frs[f]
            so, im = (sA0, 256 * k) if k < 16 else (sA1, 256 * (k - 16)) if k < 27 else (sA2, 256 * (k - 27))
            return Ins("buffer_load_dwordx4 %s, v%d, %s, s%d offen offset:%d%s" %
                       (ar(self.rAct + 4 * (f % NR), 4), self.vA3 + rt, srd(sWS), so, im, self.aux))

        def wreg(k, ct, n=4, o=0):
            return vr(self.rW3 + 8 * (k % 2) + 4 * ct + o, n) if k < 27 else ar(self.rWO + 8 * (k - 27) + 4 * ct + o, n)

        def trs(k):
            return [Ins("ds_read_b64_tr_b16 %s, v%d offset:%d" %
                        (wreg(k, ct, 2, 2 * i), self.vT3 + ct, (k % self.NS3) * 2048 + 512 * i), tag="t%d" % k)
                    for ct in range(2) for i in range(2)]

        for f in range(NR):
            p.add(act(f))
        p.wait_tag("w0")
        p.add(trs(0))
        nf = len(frs)
        side = {}

        def put(n, x):
            side.setdefault(n, []).append(x)

        from asmlib import pseudo
        nxt = self.NS3
        for k in range(1, 37):
            n = 6 * (k - 1) if k < 27 else 6 * 26 + 2 * (k - 27)
            put(n, pseudo("wait_tag", {"w%d" % k}))
            t = trs(k)
            put(n, t[:2])
            put(n + 1, t[2:])
            if nxt < 37:
                d = dma(nxt)
                put(n + 2, [pseudo("wait_ldstag", {"t%d" % (k - 1)}), d[0]])
                put(n + 3, d[1])
                nxt += 1
        red_w, red_r = {}, {}
        for rt in range(3):
            buf = (rt % 2) * 32768
            w = []
            for ct in range(2):
                for t in range(2):
                    for u in range(2):
                        a = self.acc3 + 32 * rt + 16 * ct + 8 * t + 4 * u
                        w.append(Ins("ds_write_b128 v%d, %s offset:%d" % (self.vRW + 2 * t + u, vr(a, 4), buf + 128 * ct), tag="rw"))
            r = []
            for src in range(4):
                for u in range(2):
                    r.append(Ins("ds_read_b128 %s, v%d offset:%d" % (vr(self.rSum + 8 * src + 4 * u, 4), self.vRR + u, buf + 8192 * src)))
            f = []
            for a, b in ((0, 8), (16, 24), (0, 16)):
                for k in range(4):
                    f.append(Ins("v_pk_add_f32 %s, %s, %s" % (vr(self.rSum + a + 2 * k, 2), vr(self.rSum + a + 2 * k, 2), vr(self.rSum + b + 2 * k, 2))))
            for k in range(4):
                f.append(Ins("v_cvt_pk_bf16_f32 v%d, v%d, v%d" % (28 + k, self.rSum + 2 * k, self.rSum + 2 * k + 1)))
            f.append(Ins("buffer_store_dwordx4 v[28:31], v%d, %s, 0 offen" % (self.vO3 + rt, srd(sOUT))))
            red_w[rt], red_r[rt] = w, (r, f)
        for rt in range(2):
            n0 = 162 + 20 * (rt + 1)
            for k, x in enumerate(red_w[rt]):
                put(n0 + 2 + k, x)
            put(n0 + 11, [pseudo("wait_ldstag", {"rw"}), Ins("s_barrier")])
            for k, x in enumerate(red_r[rt][0]):
                put(n0 + 11 + k // 2, x)
            for k, x in enumerate(red_r[rt][1]):
                put(min(n0 + 16 + k // 4, n0 + 19), x)
        for f in range(nf):
            k, rt = frs[f]
            for ct in range(2):
                n = 2 * f + ct
                acc = vr(self.acc3 + 32 * rt + 16 * ct, 16)
                p("v_mfma_f32_32x32x16_bf16 %s, %s, %s, %s" %
                  (acc, wreg(k, ct), ar(self.rAct + 4 * (f % NR), 4), "0" if k == 0 else acc))
                for x in side.get(n, []):
                    p.add(x)
                if ct == 1 and f + NR < nf:
                    if f + NR == 81:
                        self.stamp(7)
                        self.wait_flag(2, sRlo, 16)
                        self.wait_flag(2, sRhi, 16)
                        self.stamp(8)
                    p.add(act(f + NR))
        self.stamp(9)
        p.add(red_w[2])
        p.wait_lds("rw")
        p("s_barrier")
        p.add(red_r[2][0])
        p.add(red_r[2][1])
        self.stamp(10)

    def kernel(self, name, body):
        self.p, self.tail = Prog(), Prog()
        done = self.lab("done")
        body(done)
        txt = ".globl %s\n.p2align 8\n.type %s,@function\n%s:\n" % (name, name, name)
        txt += self.p.finalize() + done + ":\n    s_endpgm\n" + self.tail.finalize()
        return txt

    @staticmethod
    def desc(name):
        return """.section .rodata,"a"
.p2align 6
.amdhsa_kernel %s
  .amdhsa_next_free_vgpr 512
  .amdhsa_next_free_sgpr 102
  .amdhsa_accum_offset 256
  .amdhsa_group_segment_fixed_size 0
  .amdhsa_kernarg_size 80
  .amdhsa_user_sgpr_count 2
  .amdhsa_user_sgpr_kernarg_segment_ptr 1
  .amdhsa_system_sgpr_workgroup_id_x 1
  .amdhsa_float_denorm_mode_32 3
.end_amdhsa_kernel
""" % name

    def build(self):
        head = '.amdgcn_target "amdgcn-amd-amdhsa--gfx950"\n.text\n'
        if self.split:
            def k0(done):
                self.prologue(256, done)
                self.p("s_cmp_lt_u32 s%d, 30" % sJ)
                self.p("s_cbranch_scc1 %s" % done)
                self.gate()

            def k1(done):
                self.prologue(240, done)
                self.p1_setup()
                self.p1_main()

            def k2(done):
                self.prologue(256, done)
                self.p2()

            def k3(done):
                self.prologue(240, done)
                self.p3(done)
            ks = [("k0_kernel", k0, 256), ("k1_kernel", k1, 240), ("k2_kernel", k2, 256), ("k3_kernel", k3, 240)]
            top = "".join("; @launch kernel=%s grid=(%d,1,1) block=(256,1,1) lds=163840\n" % (n, g) for n, _, g in ks)
            return top + head + "".join(self.kernel(n, b) for n, b, _ in ks) + "".join(self.desc(n) for n, _, _ in ks)

        def body(done):
            p = self.p
            self.prologue(256, done)
            lg, l2, fin = self.lab("gate"), self.lab("p2"), self.lab("fin")
            p("s_cmp_ge_u32 s%d, 30" % sJ)
            p("s_cbranch_scc1 %s" % lg)
            self.p1_setup()
            self.p1_main()
            p.drain()
            p(l2 + ":")
            self.p2()
            self.p3(fin)
            p(fin + ":")
            self.flush_stamps(12)
            keep = self.p
            self.p = Prog()
            self.p(lg + ":")
            self.gate()
            self.p.drain()
            self.p("s_branch %s" % l2)
            self.tail.raw(self.p.finalize())
            self.p = keep
        name = NAME + "_kernel"
        top = "; @launch grid=(256,1,1) block=(256,1,1) lds=163840\n"
        return top + head + self.kernel(name, body) + self.desc(name)


if __name__ == "__main__":
    import argparse
    ap = argparse.ArgumentParser()
    ap.add_argument("-o", default="k.s")
    ap.add_argument("--split", action="store_true")
    ap.add_argument("--stamps", action="store_true")
    ap.add_argument("--slow", action="store_true")
    ap.add_argument("--diag", default=None)
    ap.add_argument("--pre", default=None)
    a = ap.parse_args()
    open(a.o, "w").write(Gen(split=a.split, stamps=a.stamps, force_slow=a.slow, pre=a.pre,
                             diag=tuple(int(x) for x in a.diag.split(",")) if a.diag else None).build())
```

```python
import sys, struct, math
from asmlib import Prog, Ins

NAME = "gated_mix__sliding_block__dense_activation_relu__prompt"

PQK = 161 * 128
PHO = 297 * 128
WS_FLAG = 0
WS_G = 16384
WS_TS = 32768
WS_QK = 131072
WS_V = WS_QK + 256 * PQK
WS_HO = WS_V + 256 * 10240
WS_END = WS_HO + 256 * PHO
OOB = 0x80000000
QSCALE = math.log2(math.e) / math.sqrt(20.0)


def f32(x):
    return "0x%08x" % struct.unpack("<I", struct.pack("<f", x))[0]


sX, sWA, sWB, sWS, sW2, sWO, sOUT, sDBG = 8, 12, 16, 20, 24, 28, 32, 36
sGATE = 40
sXCD, sJ, sWAVE = 3, 4, 5
sRB, sCB = 6, 7
sT = 60
sW4K = 70
sOffWA, sOffWB, sOffX = 71, 72, 73
sStA0, sStA1, sStB, sScale = 74, 75, 76, 78
sRB2, sHP = 80, 81
sMB, sNB = 82, 83
sTS = 84
sTSB = 86


def srd(r):
    return "s[%d:%d]" % (r, r + 3)


def vr(a, n=1):
    return "v%d" % a if n == 1 else "v[%d:%d]" % (a, a + n - 1)


def ar(a, n=1):
    return "a%d" % a if n == 1 else "a[%d:%d]" % (a, a + n - 1)


class Gen:
    def __init__(self, split=False, stamps=False, force_slow=False, diag=None, pre=None):
        self.pre = pre
        self.diag = diag
        self.split = split
        self.stamps = stamps
        self.force_slow = force_slow
        self.p = Prog()
        self.tail = Prog()
        self.uid = 0
        self.aux = "" if split else " sc1"

    def lab(self, s):
        self.uid += 1
        return "L_%s_%d" % (s, self.uid)

    def csel(self, d, a, b):
        self.p("s_mov_b32 s%d, 0x%x" % (d, b))
        self.p("s_cmov_b32 s%d, 0x%x" % (d, a))

    def stamp(self, k):
        if self.diag:
            if k in self.diag[:2]:
                self.p.raw("    %s s[%d:%d]\n    s_waitcnt lgkmcnt(0)\n    s_mov_b32 s%d, s%d" %
                           ("s_memrealtime" if self.diag[2] else "s_memtime", sTS, sTS + 1, 88 + k, sTS))
            return
        if not self.stamps:
            return
        self.p.raw("    s_memtime s[%d:%d]\n    s_waitcnt lgkmcnt(0)\n    s_mov_b32 s%d, s%d" % (sTS, sTS + 1, 88 + k, sTS))

    def flush_stamps(self, n):
        if self.diag:
            a, b, real, wg = self.diag
            e = self.lab("dg")
            if b < 0:
                self.p.raw("""    s_waitcnt vmcnt(0)
    s_cmp_gt_u32 s2, %d
    s_cbranch_scc1 %s
%s_l:
    s_memrealtime s[64:65]
    s_waitcnt lgkmcnt(0)
    s_sub_u32 s64, s64, s%d
    s_cmp_lt_u32 s64, 10000
    s_cbranch_scc1 %s_l
%s:""" % (wg, e, e, 88 + a, e, e))
                return
            self.p.raw("""    s_cmp_lg_u32 s2, %d
    s_cbranch_scc1 %s
    s_sub_u32 s60, s%d, s%d
    %s
    s_min_u32 s60, s60, 100000
    s_memrealtime s[62:63]
    s_waitcnt lgkmcnt(0)
%s_l:
    s_memrealtime s[64:65]
    s_waitcnt lgkmcnt(0)
    s_sub_u32 s64, s64, s62
    s_cmp_lt_u32 s64, s60
    s_cbranch_scc1 %s_l
%s:""" % (wg, e, 88 + b, 88 + a, "s_lshl_b32 s60, s60, 2" if real else "s_lshr_b32 s60, s60, 2", e, e, e))
            return
        if not self.stamps:
            return
        p = self.p
        p.drain()
        p("s_lshl_b32 s%d, s2, 2" % sT)
        p("s_add_u32 s%d, s%d, s%d" % (sT, sT, sWAVE))
        p("s_lshl_b32 s%d, s%d, 6" % (sT, sT))
        p("s_add_u32 s%d, s%d, %d" % (sT, sT, WS_TS))
        p("v_mov_b32 v2, s%d" % sT)
        p("s_mov_b64 exec, 1")
        for k in range(n):
            p("v_mov_b32 v3, s%d" % (88 + k))
            p("buffer_store_dword v3, v2, %s, 0 offen offset:%d" % (srd(sWS), 4 * k))
        p("s_getreg_b32 s%d, hwreg(HW_REG_XCC_ID)" % sT)
        p("v_mov_b32 v3, s%d" % sT)
        p("buffer_store_dword v3, v2, %s, 0 offen offset:60" % srd(sWS))
        p("s_mov_b64 exec, -1")

    def prologue(self, nwg, done):
        p = self.p
        p.reset()
        self.stamp(12)
        p("s_cmp_ge_u32 s2, %d" % nwg)
        p("s_cbranch_scc1 %s" % done)
        p("s_load_dwordx4 s[44:47], s[0:1], 0")
        p("s_load_dwordx2 s[48:49], s[0:1], 16")
        p("s_load_dwordx4 s[52:55], s[0:1], 32")
        p("s_load_dwordx8 s[60:67], s[0:1], 48")
        p("v_and_b32 v1, 63, v0")
        p("v_lshrrev_b32 v2, 6, v0")
        p("s_and_b32 s%d, s2, 7" % sXCD)
        p("v_readfirstlane_b32 s%d, v2" % sWAVE)
        p("s_lshr_b32 s%d, s2, 3" % sJ)
        p("s_waitcnt lgkmcnt(0)")
        for r, b, n in ((sX, 44, 2048 * 1280), (sWA, 46, 640 * 3840), (sWB, 52, 640 * 3456), (sWS, 66, WS_END),
                        (sW2, 54, 1728 * 1280), (sWO, 48, 640 * 1280), (sOUT, 62, 2048 * 1280), (sDBG, 64, 256),
                        (sGATE, 60, 1280)):
            p("s_mov_b32 s%d, s%d" % (r, b))
            p("s_mov_b32 s%d, s%d" % (r + 1, b + 1))
            p("s_mov_b32 s%d, %d" % (r + 2, n))
            p("s_mov_b32 s%d, 0x20000" % (r + 3))
        p("s_lshl_b32 s%d, s%d, 12" % (sW4K, sWAVE))
        self.stamp(0)
        if self.pre is not None:
            aux = " nt" if "n" in self.pre else ""
            p("s_lshl_b32 s%d, s2, 8" % sT)
            p("v_add_u32 v2, s%d, v0" % sT)
            p("v_lshlrev_b32 v2, 4, v2")
            k = 0
            lst = [(sX, 3), (sWA, 3)]
            if "a" in self.pre:
                lst += [(sWB, 3), (sW2, 3), (sWO, 1)]
            for r, n in lst:
                for i in range(n):
                    p("s_mov_b32 s%d, %d" % (sT, i << 20))
                    p("buffer_load_dwordx4 %s, v2, %s, s%d offen%s" % (vr(8 + 4 * k, 4), srd(r), sT, aux))
                    k += 1
            if "c" in self.pre:
                p("s_getpc_b64 s[%d:%d]" % (sT + 2, sT + 3))
                p("s_and_b32 s%d, s%d, 7" % (sT, sJ))
                p("s_lshl_b32 s%d, s%d, 12" % (sT, sT))
                p("v_lshlrev_b32 v3, 4, v0")
                p("v_add_u32 v3, s%d, v3" % sT)
                p("global_load_dwordx4 %s, v3, s[%d:%d]" % (vr(8 + 4 * k, 4), sT + 2, sT + 3))
            if "w" in self.pre:
                p("s_waitcnt vmcnt(0)")
            self.stamp(11)

    def signal(self, phase, s_rb, first=False):
        if self.split:
            return
        p = self.p
        p("s_waitcnt vmcnt(0)")
        p("s_barrier")
        skip = self.lab("sig")
        p("s_cmp_lg_u32 s%d, 0" % sWAVE)
        p("s_cbranch_scc1 %s" % skip)
        p("s_mov_b64 exec, 1")
        if first:
            self.spin(srd(sDBG), None, 0, 1)
        p("s_lshl_b32 s%d, s%d, 8" % (sT, s_rb))
        p("v_mov_b32 v2, s%d" % sT)
        p("v_mov_b32 v3, 1")
        p("s_mov_b32 s%d, %d" % (sT, WS_FLAG + phase * 4096))
        p("buffer_atomic_add v3, v2, %s, s%d offen sc1" % (srd(sWS), sT))
        p("s_mov_b64 exec, -1")
        p(skip + ":")
        if first:
            p("s_barrier")

    def spin(self, srd_s, s_idx, base, target):
        p = self.p
        lp, ok = self.lab("spin"), self.lab("ok")
        if s_idx is None:
            p("v_mov_b32 v2, %d" % base)
        else:
            p("s_lshl_b32 s%d, s%d, 8" % (sT, s_idx))
            p("s_add_u32 s%d, s%d, %d" % (sT, sT, base))
            p("v_mov_b32 v2, s%d" % sT)
        p("s_mov_b32 s%d, 200000" % (sT + 1))
        p(lp + ":")
        p("buffer_load_dword v3, v2, %s, 0 offen sc1" % srd_s)
        p("s_waitcnt vmcnt(0)")
        p("v_readfirstlane_b32 s%d, v3" % (sT + 2))
        p("s_sub_u32 s%d, s%d, 1" % (sT + 1, sT + 1))
        p("s_cbranch_scc1 %s" % ok)
        p("s_cmp_ge_u32 s%d, %d" % (sT + 2, target))
        p("s_cbranch_scc1 %s" % ok)
        p("s_sleep 2")
        p("s_branch %s" % lp)
        p(ok + ":")

    def wait_flag(self, phase, s_idx, target):
        if self.split:
            return
        self.spin(srd(sWS), s_idx, WS_FLAG + phase * 4096, target)

    def gate(self):
        p = self.p
        p("s_lshl_b32 s%d, s%d, 1" % (sRB, sXCD))
        p("s_add_u32 s%d, s%d, s%d" % (sRB, sRB, sJ))
        p("s_sub_u32 s%d, s%d, 30" % (sRB, sRB))
        if not self.split:
            skip = self.lab("init")
            p("s_cmp_lg_u32 s2, 240")
            p("s_cbranch_scc1 %s" % skip)
            p("s_cmp_lg_u32 s%d, 0" % sWAVE)
            p("s_cbranch_scc1 %s" % skip)
            p("v_lshlrev_b32 v2, 8, v1")
            p("v_mov_b32 v3, 0")
            p("buffer_store_dword v3, v2, %s, 0 offen sc1" % srd(sWS))
            p("s_waitcnt vmcnt(0)")
            p("v_mov_b32 v4, 1")
            p("s_mov_b64 exec, 1")
            p("buffer_store_dword v4, v3, %s, 0 offen sc1" % srd(sDBG))
            p("s_mov_b64 exec, -1")
            p(skip + ":")
        p("v_and_b32 v4, 15, v1")
        p("v_lshrrev_b32 v5, 4, v1")
        p("v_lshlrev_b32 v6, 4, v4")
        p("v_mul_u32_u24 v7, 1280, v5")
        p("v_add_u32 v7, v7, v6")
        p("s_lshl_b32 s%d, s%d, 2" % (sT, sRB))
        p("s_add_u32 s%d, s%d, s%d" % (sT, sT, sWAVE))
        p("s_mul_i32 s%d, s%d, %d" % (sT + 1, sT, 32 * 1280))
        for i in range(5):
            p("buffer_load_dwordx4 %s, v6, %s, 0 offen offset:%d" % (vr(16 + 4 * i, 4), srd(sGATE), 256 * i))
        for ps in range(8):
            for i in range(5):
                p("buffer_load_dwordx4 %s, v7, %s, s%d offen offset:%d" %
                  (vr(40 + 20 * ps + 4 * i, 4), srd(sX), sT + 1, 256 * i))
            p("s_add_u32 s%d, s%d, %d" % (sT + 1, sT + 1, 4 * 1280))
        p("v_mov_b32 v9, 0")
        for ps in range(8):
            for k in range(20):
                x, g = 40 + 20 * ps + k, 16 + k
                p("v_lshlrev_b32 v12, 16, v%d" % x)
                p("v_lshlrev_b32 v13, 16, v%d" % g)
                p("v_and_b32 v14, 0xffff0000, v%d" % x)
                p("v_and_b32 v15, 0xffff0000, v%d" % g)
                if k == 0:
                    p("v_mul_f32 v10, v12, v13")
                    p("v_mul_f32 v11, v14, v15")
                else:
                    p("v_fmac_f32 v10, v12, v13")
                    p("v_fmac_f32 v11, v14, v15")
            p("v_add_f32 v10, v10, v11")
            for sh in (8, 4, 2, 1):
                p("v_add_f32_dpp v10, v10, v10 row_ror:%d row_mask:0xf bank_mask:0xf" % sh)
            p("v_cmp_eq_u32 vcc, %d, v4" % ps)
            p("v_cndmask_b32 v9, v9, v10, vcc")
        p("v_mul_f32 v9, %s, v9" % f32(-math.log2(math.e)))
        p("v_exp_f32 v9, v9")
        p("v_add_f32 v9, 1.0, v9")
        p("v_rcp_f32 v9, v9")
        p("v_lshl_add_u32 v8, v4, 2, v5")
        p("v_lshlrev_b32 v8, 2, v8")
        p("v_mov_b32 v10, 0x%x" % OOB)
        p("v_cmp_gt_u32 vcc, 8, v4")
        p("v_cndmask_b32 v8, v10, v8, vcc")
        p("s_lshl_b32 s%d, s%d, 7" % (sT, sT))
        p("s_add_u32 s%d, s%d, %d" % (sT, sT, WS_G))
        p("buffer_store_dword v9, v8, %s, s%d offen%s" % (srd(sWS), sT, self.aux))
        self.signal(0, sRB, first=True)

    NW, NX, XB = 5, 4, 81920
    vWA, vWB, vX, vTR, vTR2, vXR = 8, 12, 16, 20, 24, 28
    vStA, vStB, vStB2, vG = 32, 33, 34, 36
    vPk = 40
    vFR = 96
    accA, accB = 128, 192

    def p1_setup(self):
        p = self.p
        T = sT
        p("s_lshr_b32 s%d, s%d, 1" % (T, sXCD))
        p("s_mul_i32 s%d, s%d, 30" % (T, T))
        p("s_add_u32 s%d, s%d, s%d" % (T, T, sJ))
        p("s_lshr_b32 s%d, s%d, 3" % (sCB, T))
        p("s_and_b32 s%d, s%d, 7" % (T, T))
        p("s_and_b32 s%d, s%d, 1" % (T + 1, sXCD))
        p("s_lshl_b32 s%d, s%d, 3" % (T + 1, T + 1))
        p("s_add_u32 s%d, s%d, s%d" % (sRB, T, T + 1))
        p("v_lshrrev_b32 v2, 4, v1")
        p("v_lshlrev_b32 v3, 2, v2")
        p("v_and_b32 v4, 15, v1")
        p("v_xor_b32 v4, v4, v3")
        p("s_lshl_b32 s%d, s%d, 4" % (T, sWAVE))
        p("v_add_u32 v5, s%d, v2" % T)
        p("v_mul_u32_u24 v6, 3840, v5")
        p("v_lshl_add_u32 v%d, v4, 4, v6" % self.vWA)
        for i in range(1, 4):
            p("v_add_u32 v%d, %d, v%d" % (self.vWA + i, i * (4 * 3840 - 1024), self.vWA))
        p("v_lshrrev_b32 v6, 3, v1")
        p("v_mul_u32_u24 v6, 1280, v6")
        p("v_and_b32 v7, 7, v1")
        p("v_xor_b32 v7, v7, v2")
        p("v_lshl_add_u32 v%d, v7, 4, v6" % self.vX)
        p("v_xor_b32 v%d, 64, v%d" % (self.vX + 1, self.vX))
        p("v_add_u32 v%d, %d, v%d" % (self.vX + 2, 2 * (8 * 1280 - 1024), self.vX))
        p("v_add_u32 v%d, %d, v%d" % (self.vX + 3, 3 * (8 * 1280 - 1024), self.vX + 1))
        p("v_add_u32 v%d, %d, v%d" % (self.vX + 1, 1 * (8 * 1280 - 1024), self.vX + 1))
        p("s_lshl_b32 s%d, s%d, 8" % (sOffWA, sCB))
        p("s_lshl_b32 s%d, s%d, 2" % (T + 2, sRB))
        p("s_add_u32 s%d, s%d, s%d" % (T + 2, T + 2, sWAVE))
        p("s_mul_i32 s%d, s%d, %d" % (sOffX, T + 2, 32 * 1280))
        self.issued = set()
        for s in range(4):
            p.add(self.dma_w(s))
            p.add(self.dma_x(s))
        p.add(self.dma_w(4))
        p("v_mul_u32_u24 v6, 3456, v5")
        p("v_lshl_add_u32 v%d, v4, 4, v6" % self.vWB)
        p("s_cmp_ge_u32 s%d, 12" % sCB)
        p("s_cselect_b32 s%d, 8, 16" % T)
        p("s_cselect_b32 s%d, 7, 8" % (T + 1))
        p("s_cselect_b32 s%d, 1536, 0" % (T + 3))
        p("s_cselect_b32 s%d, 0x%x, 0" % (T + 4, OOB))
        p("s_lshl_b32 s%d, s%d, s%d" % (sOffWB, sCB, T + 1))
        p("s_add_u32 s%d, s%d, s%d" % (sOffWB, sOffWB, T + 3))
        p("v_mov_b32 v7, 0x%x" % OOB)
        p("v_cmp_gt_u32 vcc, s%d, v4" % T)
        p("v_cndmask_b32 v%d, v7, v%d, vcc" % (self.vWB, self.vWB))
        for i in range(1, 4):
            p("v_add_u32 v%d, %d, v%d" % (self.vWB + i, i * (4 * 3456 - 1024), self.vWB))
        p("v_lshrrev_b32 v2, 5, v1")
        p("v_bfe_u32 v3, v1, 2, 2")
        p("v_lshl_add_u32 v4, v2, 3, v3")
        p("v_lshlrev_b32 v4, 8, v4")
        p("v_lshl_add_u32 v4, v3, 6, v4")
        p("v_bfe_u32 v5, v1, 4, 1")
        p("v_lshl_add_u32 v4, v5, 5, v4")
        p("v_and_b32 v5, 1, v1")
        p("v_lshl_add_u32 v4, v5, 4, v4")
        p("v_bfe_u32 v5, v1, 1, 1")
        p("v_lshl_add_u32 v%d, v5, 3, v4" % self.vTR)
        for ct in range(1, 4):
            p("v_xor_b32 v%d, %d, v%d" % (self.vTR + ct, ct * 64, self.vTR))
        for ct in range(4):
            p("v_add_u32 v%d, 0x10000, v%d" % (self.vTR2 + ct, self.vTR + ct))
        p("v_and_b32 v3, 31, v1")
        p("v_bfe_u32 v4, v1, 1, 3")
        p("v_xor_b32 v4, v4, v2")
        p("v_lshlrev_b32 v5, 7, v3")
        p("v_lshl_add_u32 v5, v4, 4, v5")
        p("s_add_u32 s%d, s%d, %d" % (T, sW4K, self.XB))
        p("v_add_u32 v%d, s%d, v5" % (self.vXR, T))
        for ks in range(1, 4):
            p("v_xor_b32 v%d, %d, v%d" % (self.vXR + ks, ks * 32, self.vXR))
        p("v_lshrrev_b32 v4, 3, v3")
        p("v_and_b32 v5, 7, v1")
        p("v_lshlrev_b32 v5, 4, v5")
        p("v_lshl_add_u32 v5, v2, 7, v5")
        p("s_mov_b32 s%d, %d" % (T, PHO))
        p("v_mad_u32_u24 v%d, v4, s%d, v5" % (self.vStB, T))
        p("v_or_b32 v%d, s%d, v%d" % (self.vStB2, T + 4, self.vStB))
        p("s_mov_b32 s%d, %d" % (T, PQK))
        p("v_mad_u32_u24 v%d, v4, s%d, v5" % (self.vStA, T))
        p("v_and_b32 v4, 19, v1")
        p("v_bfe_u32 v5, v1, 2, 1")
        p("v_lshl_add_u32 v4, v5, 3, v4")
        p("v_bfe_u32 v5, v1, 3, 1")
        p("v_lshl_add_u32 v4, v5, 2, v4")
        p("v_mul_u32_u24 v5, 10240, v2")
        p("v_lshl_add_u32 v4, v4, 4, v5")
        p("s_cmp_ge_u32 s%d, 10" % sCB)
        p("s_cselect_b64 vcc, -1, 0")
        p("v_cndmask_b32 v%d, v%d, v4, vcc" % (self.vStA, self.vStA))
        self.csel(T, 40960, 4 * PQK)
        self.csel(T + 1, WS_V - 10 * 2048, WS_QK)
        self.csel(T + 3, 20480, 256)
        p("s_mul_i32 s%d, s%d, s%d" % (sStA0, T + 2, T))
        p("s_add_u32 s%d, s%d, s%d" % (sStA0, sStA0, T + 1))
        p("s_lshl_b32 s%d, s%d, 11" % (T, sCB))
        p("s_add_u32 s%d, s%d, s%d" % (sStA0, sStA0, T))
        p("s_add_u32 s%d, s%d, s%d" % (sStA1, sStA0, T + 3))
        p("s_mul_i32 s%d, s%d, %d" % (sStB, T + 2, 4 * PHO))
        p("s_lshl_b32 s%d, s%d, 3" % (T, sOffWB))
        p("s_add_u32 s%d, s%d, s%d" % (sStB, sStB, T))
        p("s_add_u32 s%d, s%d, %d" % (sStB, sStB, WS_HO))
        p("s_cmp_lt_u32 s%d, 5" % sCB)
        p("s_cselect_b32 s%d, %s, 1.0" % (sScale, f32(QSCALE)))
        p("s_mov_b32 s%d, s%d" % (sScale + 1, sScale))

    def dma_w(self, s):
        a = s < 10
        base, off, rs, step = (self.vWA, sOffWA, sWA, 64 * 3840) if a else (self.vWB, sOffWB, sWB, 64 * 3456)
        g = []
        for i in range(4):
            x = []
            if i == 0:
                x.append(Ins("s_add_u32 m0, s%d, %d" % (sW4K, (s % self.NW) * 16384)))
            x.append(Ins("buffer_load_dwordx4 v%d, %s, s%d offen offset:%d lds" % (base + i, srd(rs), off, 1024 * i),
                         tag="W%d" % s))
            if i == 3:
                x.append(Ins("s_add_u32 s%d, s%d, %d" % (off, off, step)))
            g.append(x)
        return g

    def dma_x(self, s):
        g = []
        for i in range(4):
            x = []
            if i == 0:
                x.append(Ins("s_add_u32 m0, s%d, %d" % (sW4K, self.XB + (s % self.NX) * 16384)))
            x.append(Ins("buffer_load_dwordx4 v%d, %s, s%d offen offset:%d lds" % (self.vX + i, srd(sX), sOffX, 1024 * i),
                         tag="X%d" % s))
            if i == 3:
                x.append(Ins("s_add_u32 s%d, s%d, 128" % (sOffX, sOffX)))
            g.append(x)
        return g

    def p1_reads(self, n):
        s, ks, ct = n // 16, (n // 4) % 4, n % 4
        slot = s % self.NW
        base = self.vTR + ct if slot < 4 else self.vTR2 + ct
        off = (slot % 4) * 16384 + ks * 4096
        fr = self.vFR + 4 * (n % 8)
        r = []
        if ct == 0 and s < 10:
            r.append(Ins("ds_read_b128 %s, v%d offset:%d" % (ar(16 * s + 4 * ks, 4), self.vXR + ks, (s % self.NX) * 16384)))
        for i in range(2):
            r.append(Ins("ds_read_b64_tr_b16 %s, v%d offset:%d" % (vr(fr + 2 * i, 2), base, off + 1024 * i)))
        return r

    def p1_mfma(self, n, vrole):
        s, ks, ct = n // 16, (n // 4) % 4, n % 4
        acc = (self.accA if s < 10 else self.accB) + 16 * ct
        w = vr(self.vFR + 4 * (n % 8), 4)
        x = ar(16 * (s % 10) + 4 * ks, 4)
        c = "0" if (s % 10 == 0 and ks == 0) else vr(acc, 16)
        a, b = (x, w) if (vrole and s < 10) else (w, x)
        return Ins("v_mfma_f32_32x32x16_bf16 %s, %s, %s, %s" % (vr(acc, 16), a, b, c))

    def epi_a(self):
        g = []
        for ct in range(4):
            for t in range(2):
                a = self.accA + 16 * ct + 8 * t
                pk = self.vPk + 4 * ((2 * ct + t) % 4)
                for u in range(4):
                    g.append([Ins("v_pk_mul_f32 %s, %s, s[%d:%d]" % (vr(a + 2 * u, 2), vr(a + 2 * u, 2), sScale, sScale + 1))])
                for u in range(4):
                    g.append([Ins("v_cvt_pk_bf16_f32 v%d, v%d, v%d" % (pk + u, a + 2 * u, a + 2 * u + 1))])
                g.append([Ins("buffer_store_dwordx4 %s, v%d, %s, s%d offen offset:%d%s" %
                              (vr(pk, 4), self.vStA, srd(sWS), sStA1 if t else sStA0, 512 * ct, self.aux), tag="stA")])
        return g

    def epi_b(self):
        p = self.p
        for ct in range(4):
            for t in range(2):
                a = self.accB + 16 * ct + 8 * t
                pk = self.vPk + 4 * ((2 * ct + t) % 4)
                for u in range(4):
                    p("v_pk_mul_f32 %s, %s, %s op_sel_hi:[1,0]" % (vr(a + 2 * u, 2), vr(a + 2 * u, 2), vr(self.vG, 2)))
                for u in range(4):
                    p("v_cvt_pk_bf16_f32 v%d, v%d, v%d" % (pk + u, a + 2 * u, a + 2 * u + 1))
                for u in range(4):
                    p("v_pk_max_i16 v%d, v%d, 0" % (pk + u, pk + u))
                p("buffer_store_dwordx4 %s, v%d, %s, s%d offen offset:%d%s" %
                  (vr(pk, 4), self.vStB if ct < 2 else self.vStB2, srd(sWS), sStB, 512 * ct + 256 * t, self.aux))

    def p1_range(self, n0, n1, vrole, extra):
        p = self.p
        LOOK = 4
        for n in range(n0, n1):
            s, m = n // 16, n % 16
            p.add(self.p1_mfma(n, vrole))
            if m == 16 - LOOK and s + 1 < 20:
                p.wait_tag("W%d" % (s + 1), "X%d" % (s + 1))
                p("s_barrier")
            if n + LOOK < 320:
                p.add(self.p1_reads(n + LOOK))
            for g in extra.get(n, []):
                p.add(g)

    def p1_main(self):
        p = self.p
        extra = {}

        def put(n, g):
            extra.setdefault(n, []).append(g)

        for s in range(1, 20):
            n0 = 16 * s - 4
            gs = []
            if 4 < s + 3 < 20:
                gs += self.dma_w(s + 3)
            if 3 < s + 3 < 10:
                gs += self.dma_x(s + 3)
            for k, g in enumerate(gs):
                put(n0 + 1 + (k * 16) // len(gs), g)
        ea = self.epi_a()
        for k, g in enumerate(ea):
            put(164 + k // 2, g)
        p.wait_tag("W0", "X0")
        p("s_barrier")
        for n in range(4):
            p.add(self.p1_reads(n))
        lv, lb = self.lab("vrole"), self.lab("partb")
        p("s_cmp_ge_u32 s%d, 10" % sCB)
        p("s_cbranch_scc1 %s" % lv)
        mark = len(p.items)
        self.p1_range(0, 160, False, extra)
        p(lb + ":")
        keep = self.p
        alt = Prog()
        alt.items = list(keep.items[:mark])
        alt(lv + ":")
        self.p = alt
        self.p1_range(0, 160, True, extra)
        alt("s_branch %s" % lb)
        txt = alt.finalize()
        self.tail.raw(txt[txt.index(lv + ":"):])
        self.p = keep
        self.stamp(1)
        self.p1_range(160, 320, False, extra)
        self.stamp(2)
        self.signal(0, sRB, first=True)
        self.wait_flag(0, sRB, 16)
        p("v_and_b32 v2, 31, v1")
        p("v_lshlrev_b32 v2, 2, v2")
        p("s_lshl_b32 s%d, s%d, 2" % (sT, sRB))
        p("s_add_u32 s%d, s%d, s%d" % (sT, sT, sWAVE))
        p("s_lshl_b32 s%d, s%d, 7" % (sT, sT))
        p("s_add_u32 s%d, s%d, %d" % (sT, sT, WS_G))
        p("buffer_load_dword v%d, v2, %s, s%d offen%s" % (self.vG, srd(sWS), sT, self.aux))
        p("v_sub_f32 v%d, 1.0, v%d" % (self.vG, self.vG))
        self.epi_b()
        self.signal(1, sRB)

    KB, VB = 0, 30720
    vKD, vVD = 8, 12
    vKA, vK2, vVA, vVB = 16, 17, 18, 19
    vQO, vG2 = 20, 21
    rQA, rQB, rQ2A, rQ2B = 24, 28, 32, 34
    rK1, rK2, rV0, rV1 = 36, 40, 44, 48
    rP, rE = 52, 60
    rS = 72
    rO = 104
    rFar, rDiag = 136, 152

    def p2(self):
        p = self.p
        T = sT
        p("s_and_b32 s%d, s%d, 1" % (T, sXCD))
        p("s_lshl_b32 s%d, s%d, 3" % (T, T))
        p("s_and_b32 s%d, s%d, 7" % (T + 1, sJ))
        p("s_add_u32 s%d, s%d, s%d" % (sRB2, T, T + 1))
        p("s_lshr_b32 s%d, s%d, 1" % (T, sXCD))
        p("s_lshl_b32 s%d, s%d, 2" % (T, T))
        p("s_lshr_b32 s%d, s%d, 3" % (T + 1, sJ))
        p("s_add_u32 s%d, s%d, s%d" % (sHP, T, T + 1))
        for b in range(3):
            p("s_sub_u32 s%d, s%d, %d" % (T + 5, sRB2, b))
            p("s_max_i32 s%d, s%d, 0" % (T + 5, T + 5))
            self.wait_flag(0, T + 5, 16)
        p("s_barrier")
        self.stamp(3)
        p("v_lshlrev_b32 v%d, 4, v1" % self.vKD)
        p("v_mov_b32 v%d, v%d" % (self.vVD, self.vKD))
        for i in range(1, 4):
            p("v_add_u32 v%d, %d, v%d" % (self.vKD + i, i * (PQK - 640), self.vKD))
            p("v_add_u32 v%d, %d, v%d" % (self.vVD + i, i * (10240 - 656), self.vKD))
        p("s_mul_i32 s%d, s%d, 640" % (T, sHP))
        p("s_lshl_b32 s%d, s%d, 2" % (T + 1, sRB2))
        p("s_add_u32 s%d, s%d, s%d" % (T + 1, T + 1, sWAVE))
        p("s_mul_i32 s%d, s%d, %d" % (T + 2, T + 1, 4 * PQK))
        p("s_add_u32 s%d, s%d, s%d" % (T + 2, T + 2, T))
        p("s_add_u32 s%d, s%d, %d" % (T + 2, T + 2, WS_QK))
        p("s_mul_i32 s%d, s%d, %d" % (T + 3, T + 1, 40960))
        p("s_add_u32 s%d, s%d, s%d" % (T + 3, T + 3, T))
        p("s_add_u32 s%d, s%d, %d" % (T + 3, T + 3, WS_V))
        p("s_mul_i32 s%d, s%d, %d" % (T + 6, sWAVE, 4 * 640))
        p("s_mul_i32 s%d, s%d, %d" % (T + 7, sWAVE, 4 * 656))
        p("s_mov_b32 exec_hi, 0xff")
        for b in range(3):
            back = 2 - b
            p("s_sub_u32 s%d, s%d, %d" % (T + 4, T + 2, back * 16 * PQK - 80 * 128))
            p("s_sub_u32 s%d, s%d, %d" % (T + 5, T + 3, back * 163840))
            if back:
                p("s_cmp_lt_u32 s%d, %d" % (sRB2, back))
                p("s_cselect_b32 s%d, 0x%x, s%d" % (T + 4, OOB, T + 4))
                p("s_cselect_b32 s%d, 0x%x, s%d" % (T + 5, OOB, T + 5))
            p("s_add_u32 m0, s%d, %d" % (T + 6, self.KB + b * 16 * 640))
            for i in range(4):
                p("buffer_load_dwordx4 v%d, %s, s%d offen offset:%d%s lds" %
                  (self.vKD + i, srd(sWS), T + 4, 640 * i, self.aux), tag="KV")
            p("s_add_u32 m0, s%d, %d" % (T + 7, self.VB + b * 16 * 656))
            for i in range(4):
                p("buffer_load_dwordx4 v%d, %s, s%d offen offset:%d%s lds" %
                  (self.vVD + i, srd(sWS), T + 5, 656 * i, self.aux), tag="KV")
        p("s_mov_b32 exec_hi, -1")
        p("v_lshrrev_b32 v2, 5, v1")
        p("v_and_b32 v3, 31, v1")
        p("v_lshrrev_b32 v4, 3, v3")
        p("v_and_b32 v5, 7, v1")
        p("v_lshlrev_b32 v5, 4, v5")
        p("s_mov_b32 s%d, %d" % (T + 4, PQK))
        p("v_mad_u32_u24 v6, v4, s%d, v5" % (T + 4))
        p("v_lshl_add_u32 v7, v2, 7, v6")
        p("v_lshl_add_u32 v6, v2, 3, v6")
        p("buffer_load_dwordx4 %s, v7, %s, s%d offen%s" % (vr(self.rQA, 4), srd(sWS), T + 2, self.aux))
        p("buffer_load_dwordx4 %s, v7, %s, s%d offen offset:384%s" % (vr(self.rQB, 4), srd(sWS), T + 2, self.aux))
        p("buffer_load_dwordx2 %s, v6, %s, s%d offen offset:256%s" % (vr(self.rQ2A, 2), srd(sWS), T + 2, self.aux))
        p("v_lshlrev_b32 v6, 2, v3")
        p("s_lshl_b32 s%d, s%d, 7" % (T + 4, T + 1))
        p("s_add_u32 s%d, s%d, %d" % (T + 4, T + 4, WS_G))
        p("buffer_load_dword v%d, v6, %s, s%d offen%s" % (self.vG2, srd(sWS), T + 4, self.aux))
        p("s_mov_b32 s%d, %d" % (T + 4, PHO))
        p("v_mad_u32_u24 v6, v4, s%d, v5" % (T + 4))
        p("v_lshl_add_u32 v%d, v2, 7, v6" % self.vQO)
        p("s_mul_i32 s%d, s%d, %d" % (sStB, T + 1, 4 * PHO))
        p("s_add_u32 s%d, s%d, s%d" % (sStB, sStB, T))
        p("s_add_u32 s%d, s%d, %d" % (sStB, sStB, WS_HO + 216 * 128))
        p("v_mul_u32_u24 v6, 640, v4")
        p("v_add3_u32 v6, v6, v5, s%d" % (T + 6))
        p("v_lshl_add_u32 v%d, v2, 7, v6" % self.vKA)
        p("v_lshl_add_u32 v%d, v2, 3, v6" % self.vK2)
        p("v_and_b32 v6, 3, v1")
        p("v_bfe_u32 v7, v1, 2, 1")
        p("v_lshl_add_u32 v7, v7, 3, v6")
        p("v_bfe_u32 v4, v1, 3, 1")
        p("v_lshl_add_u32 v7, v4, 2, v7")
        p("v_add_u32 v4, 24, v7")
        p("v_add_u32 v5, 16, v6")
        p("v_add_u32 v6, 20, v6")
        p("v_cmp_gt_u32 vcc, 16, v3")
        p("v_cndmask_b32 v7, v5, v7, vcc")
        p("v_cndmask_b32 v4, v6, v4, vcc")
        p("v_cmp_gt_u32 vcc, 24, v3")
        p("v_cndmask_b32 v7, 40, v7, vcc")
        p("v_cndmask_b32 v4, 40, v4, vcc")
        p("v_mul_u32_u24 v5, 656, v2")
        p("s_add_u32 s%d, s%d, %d" % (T + 7, T + 7, self.VB))
        p("v_add_u32 v5, s%d, v5" % (T + 7))
        p("v_lshl_add_u32 v%d, v7, 4, v5" % self.vVA)
        p("v_lshl_add_u32 v%d, v4, 4, v5" % self.vVB)
        p("v_lshrrev_b32 v4, 4, v1")
        p("v_add_u32 v4, s%d, v4" % sRB2)
        p("v_mov_b32 v5, 0x3f803f80")
        p("v_cmp_le_u32 vcc, 2, v4")
        p("v_cndmask_b32 v%d, 0, v5, vcc" % self.rE)
        for k in range(1, 4):
            p("v_mov_b32 v%d, v%d" % (self.rE + k, self.rE))
        p("v_mul_u32_u24 v4, 656, v1")
        p("s_mov_b32 exec_hi, 0xffff")
        p("ds_write_b128 v4, %s offset:%d" % (vr(self.rE, 4), self.VB + 640), tag="ones")
        p("s_mov_b32 exec_hi, -1")
        big = 2.0 ** 100
        p("v_lshlrev_b32 v4, 2, v2")
        p("v_sub_u32 v4, v3, v4")
        p("v_cvt_f32_i32 v4, v4")
        p("v_add_f32 v4, 0.5, v4")
        p("v_mul_f32 v4, %s, v4" % f32(big))
        for r in range(16):
            c = 8 * (r // 4) + r % 4
            p("v_add_f32 v5, %s, v4" % f32(-c * big))
            p("v_min_f32 v%d, 0, v5" % (self.rDiag + r))
            p("v_min_f32 v%d, 0, -v5" % (self.rFar + r))
        p("v_cmp_eq_u32 vcc, 0, v2")
        for k in range(2):
            p("v_cndmask_b32 v%d, v%d, 0, vcc" % (self.rQ2B + k, self.rQ2A + k))
            p("v_cndmask_b32 v%d, 0, v%d, vcc" % (self.rQ2A + k, self.rQ2A + k))
        p("s_waitcnt vmcnt(0) lgkmcnt(0)")
        p("s_barrier")
        self.stamp(4)
        self.p2_main()
        self.p2_epi()
        self.stamp(5)
        self.signal(2, sRB2)

    def rdK1(self, u):
        return "ds_read_b128 %s, v%d offset:%d" % (vr(self.rK1, 4), self.vKA, self.KB + (u // 2) * 2560 + 384 * (u % 2))

    def rdK2(self, i):
        return "ds_read_b64 %s, v%d offset:%d" % (vr(self.rK2, 2), self.vK2, self.KB + i * 2560 + 256)

    def rdV(self, u, t):
        return "ds_read_b128 %s, v%d offset:%d" % (vr(self.rV1 if t else self.rV0, 4), self.vVB if u % 2 else self.vVA,
                                                    (4 * (u // 2) + 2 * t) * 656)

    def qk1(self, u):
        i = u // 2
        c = vr(self.rFar, 16) if i == 0 else vr(self.rDiag, 16) if i == 8 else "0"
        return "v_mfma_f32_32x32x16_bf16 %s, %s, %s, %s" % (
            vr(self.rS + 16 * (u % 2), 16), vr(self.rK1, 4), vr(self.rQB if u % 2 else self.rQA, 4), c)

    def qk2(self, u):
        s = vr(self.rS + 16 * (u % 2), 16)
        return "v_mfma_f32_32x32x8_bf16 %s, %s, %s, %s" % (s, vr(self.rK2, 2), vr(self.rQ2B if u % 2 else self.rQ2A, 2), s)

    def pv(self, u, t):
        o = vr(self.rO + 16 * (u % 2), 16)
        return "v_mfma_f32_32x32x16_bf16 %s, %s, %s, %s" % (
            o, vr(self.rV1 if t else self.rV0, 4), vr(self.rP + 4 * t, 4), "0" if (u < 2 and t == 0) else o)

    def p2_main(self):
        p = self.p
        NU = 18
        ex = lambda u, r: "v_exp_f32 v%d, v%d" % (self.rE + r % 8, self.rS + 16 * (u % 2) + r)
        cv = lambda k: "v_cvt_pk_bf16_f32 v%d, v%d, v%d" % (self.rP + k, self.rE + (2 * k) % 8, self.rE + (2 * k + 1) % 8)
        p(self.rdK1(0))
        p(self.rdK2(0))
        p(self.rdV(0, 0))
        p(self.qk1(0))
        p(self.rdK1(1))
        p(self.qk2(0))
        for u in range(NU):
            nx = u + 1 < NU
            if nx:
                p(self.qk1(u + 1))
                if u + 2 < NU:
                    p(self.rdK1(u + 2))
            if u:
                p(cv(6)); p(cv(7))
            for r in range(0, 4):
                p(ex(u, r))
            if u:
                p(self.pv(u - 1, 1))
            p(self.rdV(u, 1))
            p(cv(0)); p(cv(1))
            for r in range(4, 8):
                p(ex(u, r))
            if nx:
                p(self.qk2(u + 1))
                if (u + 1) % 2 == 1 and u + 2 < NU:
                    p(self.rdK2((u + 2) // 2))
            p(cv(2)); p(cv(3))
            for r in range(8, 12):
                p(ex(u, r))
            p(self.pv(u, 0))
            if nx:
                p(self.rdV(u + 1, 0))
            p(cv(4)); p(cv(5))
            for r in range(12, 16):
                p(ex(u, r))
        p(cv(6)); p(cv(7))
        p(self.pv(NU - 1, 1))

    def p2_epi(self):
        p = self.p
        slow, back = self.lab("slow"), self.lab("norm")
        lA, lB = self.rO + 12, self.rO + 16 + 12
        p("v_max_f32 v2, v%d, v%d" % (lA, lB))
        p("v_min_f32 v3, v%d, v%d" % (lA, lB))
        p("v_mov_b32 v4, 0")
        for hd in range(2):
            for k in range(0, 12):
                p("v_fma_f32 v4, v%d, 0, v4" % (self.rO + 16 * hd + k))
        p("v_fma_f32 v4, v%d, 0, v4" % lA)
        p("v_fma_f32 v4, v%d, 0, v4" % lB)
        p("v_add_f32 v2, v2, v4")
        p("v_cmp_nge_f32 vcc, %s, v2" % f32(2.0 ** 60))
        p("s_mov_b64 s[%d:%d], vcc" % (sT, sT + 1))
        p("v_cmp_nle_f32 vcc, %s, v3" % f32(2.0 ** -60))
        p("s_or_b64 vcc, vcc, s[%d:%d]" % (sT, sT + 1))
        if self.force_slow:
            p("s_branch %s" % slow)
        else:
            p("s_cbranch_vccnz %s" % slow)
        p(back + ":")
        for hd in range(2):
            o = self.rO + 16 * hd
            p("v_rcp_f32 v2, v%d" % (o + 12))
            p("v_mul_f32 v2, v%d, v2" % self.vG2)
            for k in range(6):
                p("v_pk_mul_f32 %s, %s, v[2:3] op_sel_hi:[1,0]" % (vr(o + 2 * k, 2), vr(o + 2 * k, 2)))
            for k in range(4):
                p("v_cvt_pk_bf16_f32 v%d, v%d, v%d" % (self.rS + 4 * hd + k, o + 2 * k, o + 2 * k + 1))
            for k in range(2):
                p("v_cvt_pk_bf16_f32 v%d, v%d, v%d" % (self.rS + 8 + 2 * hd + k, o + 8 + 2 * k, o + 9 + 2 * k))
            p("buffer_store_dwordx4 %s, v%d, %s, s%d offen offset:%d%s" %
              (vr(self.rS + 4 * hd, 4), self.vQO, srd(sWS), sStB, 384 * hd, self.aux))
        p("s_mov_b32 exec_hi, 0")
        p("buffer_store_dwordx4 %s, v%d, %s, s%d offen offset:256%s" %
          (vr(self.rS + 8, 4), self.vQO, srd(sWS), sStB, self.aux))
        p("s_mov_b32 exec_hi, -1")
        self.p2_slow(slow, back)

    def p2_slow(self, slow, back):
        q = Prog()
        T = sT
        S, P = self.rS, self.rP
        aK1, aK2, aV = 4, 5, 6
        vM = 7
        q(slow + ":")
        q("s_nop 15")
        q("s_lshl_b32 s%d, s%d, 2" % (T, sRB2))
        q("s_add_u32 s%d, s%d, s%d" % (T, T, sWAVE))
        q("s_sub_u32 s%d, 8, s%d" % (T, T))
        q("s_max_i32 s%d, s%d, 0" % (T, T))
        for hd in range(2):
            O = self.rO + 16 * hd
            for ps in range(2):
                lp, nm, nm2 = self.lab("sl"), self.lab("nm"), self.lab("nm2")
                q("s_mov_b32 s%d, s%d" % (T + 1, T))
                q("s_mul_i32 s%d, s%d, 2560" % (T + 2, T))
                q("s_mul_i32 s%d, s%d, 2624" % (T + 3, T))
                q("v_add_u32 v%d, s%d, v%d" % (aK1, T + 2, self.vKA))
                q("v_add_u32 v%d, s%d, v%d" % (aK2, T + 2, self.vK2))
                q("v_add_u32 v%d, s%d, v%d" % (aV, T + 3, self.vVB if hd else self.vVA))
                if ps == 0:
                    q("v_mov_b32 v%d, 0xff800000" % vM)
                else:
                    for r in range(16):
                        q("v_mov_b32 v%d, 0" % (O + r))
                q(lp + ":")
                q("ds_read_b128 %s, v%d offset:%d" % (vr(self.rK1, 4), aK1, self.KB + 384 * hd))
                q("ds_read_b64 %s, v%d offset:%d" % (vr(self.rK2, 2), aK2, self.KB + 256))
                q("ds_read_b128 %s, v%d" % (vr(self.rV0, 4), aV))
                q("ds_read_b128 %s, v%d offset:%d" % (vr(self.rV1, 4), aV, 2 * 656))
                q("s_waitcnt lgkmcnt(0)")
                q("v_mfma_f32_32x32x16_bf16 %s, %s, %s, 0" % (vr(S, 16), vr(self.rK1, 4), vr(self.rQB if hd else self.rQA, 4)))
                q("v_mfma_f32_32x32x8_bf16 %s, %s, %s, %s" %
                  (vr(S, 16), vr(self.rK2, 2), vr(self.rQ2B if hd else self.rQ2A, 2), vr(S, 16)))
                q("s_nop 15")
                q("v_mov_b32 v2, 0xff800000")
                for which, reg, lab in ((0, self.rFar, nm), (8, self.rDiag, nm2)):
                    q("s_cmp_lg_u32 s%d, %d" % (T + 1, which))
                    q("s_cbranch_scc1 %s" % lab)
                    for r in range(16):
                        q("v_cmp_eq_f32 vcc, 0, v%d" % (reg + r))
                        q("v_cndmask_b32 v%d, v2, v%d, vcc" % (S + r, S + r))
                    q(lab + ":")
                if ps == 0:
                    for r in range(0, 16, 2):
                        q("v_max3_f32 v%d, v%d, v%d, v%d" % (vM, S + r, S + r + 1, vM))
                else:
                    for r in range(16):
                        q("v_sub_f32 v%d, v%d, v%d" % (S + r, S + r, vM))
                        q("v_exp_f32 v%d, v%d" % (S + r, S + r))
                    for k in range(8):
                        q("v_cvt_pk_bf16_f32 v%d, v%d, v%d" % (P + k, S + 2 * k, S + 2 * k + 1))
                    for t in range(2):
                        q("v_mfma_f32_32x32x16_bf16 %s, %s, %s, %s" %
                          (vr(O, 16), vr(self.rV1 if t else self.rV0, 4), vr(P + 4 * t, 4), vr(O, 16)))
                q("v_add_u32 v%d, 2560, v%d" % (aK1, aK1))
                q("v_add_u32 v%d, 2560, v%d" % (aK2, aK2))
                q("v_add_u32 v%d, 2624, v%d" % (aV, aV))
                q("s_add_u32 s%d, s%d, 1" % (T + 1, T + 1))
                q("s_cmp_lt_u32 s%d, 9" % (T + 1))
                q("s_cbranch_scc1 %s" % lp)
                if ps == 0:
                    q("v_mov_b32 v2, v%d" % vM)
                    q("v_permlane32_swap_b32 v2, v%d" % vM)
                    q("v_max_f32 v%d, v2, v%d" % (vM, vM))
        q("s_nop 15")
        q("s_branch %s" % back)
        self.tail.raw(q.finalize())

    NS3, RED = 12, 98304
    vD3, vT3, vA3, vRW, vRR, vO3 = 8, 12, 14, 18, 22, 24
    rW3 = 32
    rSum = 48
    acc3 = 160
    rAct = 0
    rWO = 128
    NA = 9

    def p3(self, done):
        p = self.p
        T = sT
        p("s_cmp_ge_u32 s%d, 30" % sJ)
        p("s_cbranch_scc1 %s" % done)
        p("s_mul_i32 s%d, s%d, 52" % (T, sJ))
        p("s_lshr_b32 s%d, s%d, 8" % (T, T))
        p("s_mul_i32 s%d, s%d, 5" % (T + 1, T))
        p("s_sub_u32 s%d, s%d, s%d" % (T + 1, sJ, T + 1))
        p("s_and_b32 s%d, s%d, 3" % (T + 2, sXCD))
        p("s_mul_i32 s%d, s%d, 6" % (T + 2, T + 2))
        p("s_add_u32 s%d, s%d, s%d" % (sMB, T + 2, T))
        p("s_lshr_b32 s%d, s%d, 2" % (T + 2, sXCD))
        p("s_mul_i32 s%d, s%d, 5" % (T + 2, T + 2))
        p("s_add_u32 s%d, s%d, s%d" % (sNB, T + 2, T + 1))
        sW2o, sWOo, sA0, sA1, sA2, sL3, sRlo, sRhi = 71, 72, 73, 74, 75, 76, 77, 78
        p("v_lshrrev_b32 v2, 3, v1")
        p("v_bfe_u32 v3, v1, 4, 1")
        p("v_lshlrev_b32 v3, 2, v3")
        p("v_and_b32 v4, 7, v1")
        p("v_xor_b32 v3, v3, v4")
        p("v_mul_u32_u24 v5, 1280, v2")
        p("v_lshl_add_u32 v%d, v3, 4, v5" % self.vD3)
        p("v_add_u32 v%d, %d, v%d" % (self.vD3 + 1, 8 * 1280 - 1024, self.vD3))
        p("s_lshl_b32 s%d, s%d, 7" % (T, sNB))
        p("s_mul_i32 s%d, s%d, %d" % (sW2o, sWAVE, 27 * 16 * 1280))
        p("s_add_u32 s%d, s%d, s%d" % (sW2o, sW2o, T))
        p("s_mul_i32 s%d, s%d, %d" % (sWOo, sWAVE, 10 * 16 * 1280))
        p("s_add_u32 s%d, s%d, s%d" % (sWOo, sWOo, T))
        p("s_mul_i32 s%d, s%d, %d" % (sL3, sWAVE, self.NS3 * 2048))
        p("s_barrier")

        def dma(k):
            rs, off = (sW2, sW2o) if k < 27 else (sWO, sWOo)
            return [[Ins("s_add_u32 m0, s%d, %d" % (sL3, (k % self.NS3) * 2048)),
                     Ins("buffer_load_dwordx4 v%d, %s, s%d offen lds" % (self.vD3, srd(rs), off), tag="w%d" % k)],
                    [Ins("buffer_load_dwordx4 v%d, %s, s%d offen offset:1024 lds" % (self.vD3 + 1, srd(rs), off), tag="w%d" % k),
                     Ins("s_add_u32 s%d, s%d, %d" % (off, off, 16 * 1280))]]

        for k in range(self.NS3):
            p.add(dma(k))
        p("s_mul_i32 s%d, s%d, 11" % (T + 1, sMB))
        p("s_add_u32 s%d, s%d, s%d" % (T + 2, T + 1, sWAVE))
        p("s_mul_i32 s%d, s%d, %d" % (T + 2, T + 2, 8 * 1280))
        p("s_add_u32 s%d, s%d, s%d" % (T + 2, T + 2, T))
        p("v_lshl_add_u32 v5, v4, 4, v5")
        p("v_add_u32 v%d, s%d, v5" % (self.vO3, T + 2))
        p("v_add_u32 v%d, %d, v%d" % (self.vO3 + 1, 32 * 1280, self.vO3))
        p("s_cmp_eq_u32 s%d, 3" % sWAVE)
        self.csel(T + 2, OOB, 64 * 1280)
        p("v_add_u32 v%d, s%d, v%d" % (self.vO3 + 2, T + 2, self.vO3))
        p("v_lshlrev_b32 v5, 1, v4")
        p("v_xor_b32 v5, v5, v2")
        p("v_lshlrev_b32 v5, 4, v5")
        p("v_lshl_add_u32 v5, v2, 8, v5")
        p("s_lshl_b32 s%d, s%d, 11" % (T + 2, sWAVE))
        p("s_add_u32 s%d, s%d, %d" % (T + 2, T + 2, self.RED))
        p("v_add_u32 v%d, s%d, v5" % (self.vRR, T + 2))
        p("v_xor_b32 v%d, 16, v%d" % (self.vRR + 1, self.vRR))
        p("v_lshrrev_b32 v2, 5, v1")
        p("v_bfe_u32 v3, v1, 2, 2")
        p("v_lshl_add_u32 v5, v2, 3, v3")
        p("v_lshlrev_b32 v5, 7, v5")
        p("v_bfe_u32 v6, v1, 3, 1")
        p("v_lshl_add_u32 v5, v6, 6, v5")
        p("v_bfe_u32 v6, v1, 4, 1")
        p("v_lshl_add_u32 v5, v6, 5, v5")
        p("v_and_b32 v6, 1, v1")
        p("v_lshl_add_u32 v5, v6, 4, v5")
        p("v_bfe_u32 v6, v1, 1, 1")
        p("v_lshl_add_u32 v5, v6, 3, v5")
        p("v_add_u32 v%d, s%d, v5" % (self.vT3, sL3))
        p("v_xor_b32 v%d, 64, v%d" % (self.vT3 + 1, self.vT3))
        p("v_and_b32 v3, 31, v1")
        p("v_lshlrev_b32 v5, 1, v2")
        p("v_xor_b32 v5, v5, v4")
        p("v_lshlrev_b32 v5, 4, v5")
        p("v_lshl_add_u32 v5, v3, 8, v5")
        p("s_lshl_b32 s%d, s%d, 13" % (T + 2, sWAVE))
        p("s_add_u32 s%d, s%d, %d" % (T + 2, T + 2, self.RED))
        p("v_add_u32 v%d, s%d, v5" % (self.vRW, T + 2))
        for k, x in ((1, 16), (2, 64), (3, 80)):
            p("v_xor_b32 v%d, %d, v%d" % (self.vRW + k, x, self.vRW))
        p("v_lshrrev_b32 v5, 3, v3")
        p("v_lshlrev_b32 v6, 4, v4")
        p("v_lshl_add_u32 v6, v2, 7, v6")
        p("s_mov_b32 s%d, %d" % (T + 2, PHO))
        p("v_mad_u32_u24 v6, v5, s%d, v6" % (T + 2))
        p("s_mul_i32 s%d, s%d, %d" % (T + 2, T + 1, PHO))
        p("s_add_u32 s%d, s%d, %d" % (T + 2, T + 2, WS_HO))
        p("v_add_u32 v%d, s%d, v6" % (self.vA3, T + 2))
        p("v_add_u32 v%d, %d, v%d" % (self.vA3 + 1, 4 * PHO, self.vA3))
        p("v_add_u32 v%d, %d, v%d" % (self.vA3 + 2, 8 * PHO, self.vA3))
        p("v_mov_b32 v6, 0x%x" % OOB)
        p("v_cmp_gt_u32 vcc, 3, v5")
        p("v_cndmask_b32 v%d, v6, v%d, vcc" % (self.vA3 + 2, self.vA3 + 2))
        p("s_mul_i32 s%d, s%d, %d" % (sA0, sWAVE, 27 * 256))
        p("s_add_u32 s%d, s%d, 4096" % (sA1, sA0))
        p("s_mul_i32 s%d, s%d, %d" % (sA2, sWAVE, 10 * 256))
        p("s_add_u32 s%d, s%d, %d" % (sA2, sA2, 216 * 128))
        p("s_lshr_b32 s%d, s%d, 4" % (sRlo, T + 1))
        p("s_add_u32 s%d, s%d, 10" % (sRhi, T + 1))
        p("s_lshr_b32 s%d, s%d, 4" % (sRhi, sRhi))
        p("s_min_u32 s%d, s%d, 15" % (sRhi, sRhi))
        self.wait_flag(1, sRlo, 15)
        self.wait_flag(1, sRhi, 15)
        self.stamp(6)

        frs = [(k, rt) for k in range(27) for rt in range(3)] + [(27 + k, rt) for rt in range(3) for k in range(10)]
        NR = 3 * self.NA

        def act(f):
            k, rt = frs[f]
            so, im = (sA0, 256 * k) if k < 16 else (sA1, 256 * (k - 16)) if k < 27 else (sA2, 256 * (k - 27))
            return Ins("buffer_load_dwordx4 %s, v%d, %s, s%d offen offset:%d%s" %
                       (ar(self.rAct + 4 * (f % NR), 4), self.vA3 + rt, srd(sWS), so, im, self.aux))

        def wreg(k, ct, n=4, o=0):
            return vr(self.rW3 + 8 * (k % 2) + 4 * ct + o, n) if k < 27 else ar(self.rWO + 8 * (k - 27) + 4 * ct + o, n)

        def trs(k):
            return [Ins("ds_read_b64_tr_b16 %s, v%d offset:%d" %
                        (wreg(k, ct, 2, 2 * i), self.vT3 + ct, (k % self.NS3) * 2048 + 512 * i), tag="t%d" % k)
                    for ct in range(2) for i in range(2)]

        for f in range(NR):
            p.add(act(f))
        p.wait_tag("w0")
        p.add(trs(0))
        nf = len(frs)
        side = {}

        def put(n, x):
            side.setdefault(n, []).append(x)

        from asmlib import pseudo
        nxt = self.NS3
        for k in range(1, 37):
            n = 6 * (k - 1) if k < 27 else 6 * 26 + 2 * (k - 27)
            put(n, pseudo("wait_tag", {"w%d" % k}))
            t = trs(k)
            put(n, t[:2])
            put(n + 1, t[2:])
            if nxt < 37:
                d = dma(nxt)
                put(n + 2, [pseudo("wait_ldstag", {"t%d" % (k - 1)}), d[0]])
                put(n + 3, d[1])
                nxt += 1
        red_w, red_r = {}, {}
        for rt in range(3):
            buf = (rt % 2) * 32768
            w = []
            for ct in range(2):
                for t in range(2):
                    for u in range(2):
                        a = self.acc3 + 32 * rt + 16 * ct + 8 * t + 4 * u
                        w.append(Ins("ds_write_b128 v%d, %s offset:%d" % (self.vRW + 2 * t + u, vr(a, 4), buf + 128 * ct), tag="rw"))
            r = []
            for src in range(4):
                for u in range(2):
                    r.append(Ins("ds_read_b128 %s, v%d offset:%d" % (vr(self.rSum + 8 * src + 4 * u, 4), self.vRR + u, buf + 8192 * src)))
            f = []
            for a, b in ((0, 8), (16, 24), (0, 16)):
                for k in range(4):
                    f.append(Ins("v_pk_add_f32 %s, %s, %s" % (vr(self.rSum + a + 2 * k, 2), vr(self.rSum + a + 2 * k, 2), vr(self.rSum + b + 2 * k, 2))))
            for k in range(4):
                f.append(Ins("v_cvt_pk_bf16_f32 v%d, v%d, v%d" % (28 + k, self.rSum + 2 * k, self.rSum + 2 * k + 1)))
            f.append(Ins("buffer_store_dwordx4 v[28:31], v%d, %s, 0 offen" % (self.vO3 + rt, srd(sOUT))))
            red_w[rt], red_r[rt] = w, (r, f)
        for rt in range(2):
            n0 = 162 + 20 * (rt + 1)
            for k, x in enumerate(red_w[rt]):
                put(n0 + 2 + k, x)
            put(n0 + 11, [pseudo("wait_ldstag", {"rw"}), Ins("s_barrier")])
            for k, x in enumerate(red_r[rt][0]):
                put(n0 + 11 + k // 2, x)
            for k, x in enumerate(red_r[rt][1]):
                put(min(n0 + 16 + k // 4, n0 + 19), x)
        for f in range(nf):
            k, rt = frs[f]
            for ct in range(2):
                n = 2 * f + ct
                acc = vr(self.acc3 + 32 * rt + 16 * ct, 16)
                p("v_mfma_f32_32x32x16_bf16 %s, %s, %s, %s" %
                  (acc, wreg(k, ct), ar(self.rAct + 4 * (f % NR), 4), "0" if k == 0 else acc))
                for x in side.get(n, []):
                    p.add(x)
                if ct == 1 and f + NR < nf:
                    if f + NR == 81:
                        self.stamp(7)
                        self.wait_flag(2, sRlo, 16)
                        self.wait_flag(2, sRhi, 16)
                        self.stamp(8)
                    p.add(act(f + NR))
        self.stamp(9)
        p.add(red_w[2])
        p.wait_lds("rw")
        p("s_barrier")
        p.add(red_r[2][0])
        p.add(red_r[2][1])
        self.stamp(10)

    def kernel(self, name, body):
        self.p, self.tail = Prog(), Prog()
        done = self.lab("done")
        body(done)
        txt = ".globl %s\n.p2align 8\n.type %s,@function\n%s:\n" % (name, name, name)
        txt += self.p.finalize() + done + ":\n    s_endpgm\n" + self.tail.finalize()
        return txt

    @staticmethod
    def desc(name):
        return """.section .rodata,"a"
.p2align 6
.amdhsa_kernel %s
  .amdhsa_next_free_vgpr 512
  .amdhsa_next_free_sgpr 102
  .amdhsa_accum_offset 256
  .amdhsa_group_segment_fixed_size 0
  .amdhsa_kernarg_size 80
  .amdhsa_user_sgpr_count 2
  .amdhsa_user_sgpr_kernarg_segment_ptr 1
  .amdhsa_system_sgpr_workgroup_id_x 1
  .amdhsa_float_denorm_mode_32 3
.end_amdhsa_kernel
""" % name

    def build(self):
        head = '.amdgcn_target "amdgcn-amd-amdhsa--gfx950"\n.text\n'
        if self.split:
            def k0(done):
                self.prologue(256, done)
                self.p("s_cmp_lt_u32 s%d, 30" % sJ)
                self.p("s_cbranch_scc1 %s" % done)
                self.gate()

            def k1(done):
                self.prologue(240, done)
                self.p1_setup()
                self.p1_main()

            def k2(done):
                self.prologue(256, done)
                self.p2()

            def k3(done):
                self.prologue(240, done)
                self.p3(done)
            ks = [("k0_kernel", k0, 256), ("k1_kernel", k1, 240), ("k2_kernel", k2, 256), ("k3_kernel", k3, 240)]
            top = "".join("; @launch kernel=%s grid=(%d,1,1) block=(256,1,1) lds=163840\n" % (n, g) for n, _, g in ks)
            return top + head + "".join(self.kernel(n, b) for n, b, _ in ks) + "".join(self.desc(n) for n, _, _ in ks)

        def body(done):
            p = self.p
            self.prologue(256, done)
            lg, l2, fin = self.lab("gate"), self.lab("p2"), self.lab("fin")
            p("s_cmp_ge_u32 s%d, 30" % sJ)
            p("s_cbranch_scc1 %s" % lg)
            self.p1_setup()
            self.p1_main()
            p.drain()
            p(l2 + ":")
            self.p2()
            self.p3(fin)
            p(fin + ":")
            self.flush_stamps(13)
            keep = self.p
            self.p = Prog()
            self.p(lg + ":")
            self.gate()
            self.p.drain()
            self.p("s_branch %s" % l2)
            self.tail.raw(self.p.finalize())
            self.p = keep
        name = NAME + "_kernel"
        top = "; @launch grid=(256,1,1) block=(256,1,1) lds=163840\n"
        return top + head + self.kernel(name, body) + self.desc(name)


if __name__ == "__main__":
    import argparse
    ap = argparse.ArgumentParser()
    ap.add_argument("-o", default="k.s")
    ap.add_argument("--split", action="store_true")
    ap.add_argument("--stamps", action="store_true")
    ap.add_argument("--slow", action="store_true")
    ap.add_argument("--diag", default=None)
    ap.add_argument("--pre", default=None)
    a = ap.parse_args()
    open(a.o, "w").write(Gen(split=a.split, stamps=a.stamps, force_slow=a.slow, pre=a.pre,
                             diag=tuple(int(x) for x in a.diag.split(",")) if a.diag else None).build())
```

```python
import sys, struct, math
from asmlib import Prog, Ins, pseudo

NAME = "gated_mix__sliding_block__dense_activation_relu__prompt"

PQK = 161 * 128
PHO = 297 * 128
WS_FLAG = 0
WS_G = 16384
WS_TS = 32768
WS_QK = 131072
WS_V = WS_QK + 256 * PQK
WS_HO = WS_V + 256 * 10240
WS_END = WS_HO + 256 * PHO
OOB = 0x80000000
QSCALE = math.log2(math.e) / math.sqrt(20.0)
SLOT = 16384


def f32(x):
    return "0x%08x" % struct.unpack("<I", struct.pack("<f", x))[0]


def srd(r):
    return "s[%d:%d]" % (r, r + 3)


def vr(a, n=1):
    return "v%d" % a if n == 1 else "v[%d:%d]" % (a, a + n - 1)


def ar(a, n=1):
    return "a%d" % a if n == 1 else "a[%d:%d]" % (a, a + n - 1)


sXCD, sJ, sWAVE, sRB, sCB = 3, 4, 5, 6, 7
sX, sWA, sWB, sWS, sW2, sWO, sOUT, sDBG = 8, 12, 16, 20, 24, 28, 32, 36
sGATE = 40
sW4K = 44
sOffWA, sOffWB, sOffX, sOffG = 45, 46, 47, 48
sStA0, sStA1, sStB = 49, 50, 51
sScale = 52
sRB2, sHP, sMB, sNB = 54, 55, 56, 57
sKO = 58
sVO = 61
sKM, sVM = 64, 65
sQO, sGO, sStO = 66, 67, 68
sOffW2, sOffWO, sOffH, sOffO = 69, 70, 71, 72
sHelp = 73
sQB = 74
sTB = 75
sKA = 56
sT = 76
sTS = 88
sST = 90

vTR, vTR2 = 8, 12
vWB = 16
vStA, vStB, vStB2, vGst = 20, 21, 22, 23
vG = 24
vD3, vD3o = 26, 28
vT3 = 30
vA3 = 36
vSig, vSig2, vOne, vP0, vP1, vF = 39, 40, 41, 42, 43, 44
vQO, vG2 = 45, 46
accG = 48
vFR = 64
accA, accB = 96, 192
vWA, vX, vXR = 160, 164, 168
vGA = 172
rGF = 176
vPk = 184
rE, rP = 48, 56
rS = 64
rFar, rDiag, rO = 96, 112, 128
vKD, vVD = 128, 132
vQ1, vQ2, vGL = 136, 137, 138
rQA, rQB, rQ2A, rQ2B = 160, 164, 168, 170
vKA, vK2, vVA, vVB = 172, 173, 174, 175
rK1, rV0, rV1, rK2 = 176, 180, 184, 188
rH = 192
rW3 = 48
acc3 = 64
vA3o = 160
vRW, vRR, vO3 = 164, 168, 170
rSum = 192
rOut = 224
NRING = 33
KB, VB = 0, 2 * SLOT
GB = 9 * SLOT


class Gen:
    def __init__(self, stamps=False, force_slow=False, diag=None, opt=None):
        self.stamps, self.force_slow, self.diag = stamps, force_slow, diag
        self.o = dict(rotA=(1, 1), rot3=(9, 11), roto=(3, 4), warm=0, outsc=0, tlb=0)
        self.o.update(opt or {})
        self.p = Prog()
        self.tail = Prog()
        self.uid = 0

    def lab(self, s):
        self.uid += 1
        return "L_%s_%d" % (s, self.uid)

    def csel(self, d, a, b):
        self.p("s_mov_b32 s%d, 0x%x" % (d, b))
        self.p("s_cmov_b32 s%d, 0x%x" % (d, a))

    def cap(self, fn):
        keep, self.p = self.p, Prog()
        fn()
        items, self.p = self.p.items, keep
        return items

    def stamp_items(self, k):
        if self.diag:
            if k not in self.diag[:2]:
                return []
            op = "s_memrealtime" if self.diag[2] else "s_memtime"
        elif self.stamps:
            op = "s_memtime"
        else:
            return []
        return [pseudo("raw", "    %s s[%d:%d]\n    s_waitcnt lgkmcnt(0)\n    s_mov_b32 s%d, s%d" %
                       (op, sTS, sTS + 1, sST + k, sTS))]

    def stamp(self, k):
        self.p.add(self.stamp_items(k))

    def flush_stamps(self):
        p = self.p
        if self.diag:
            a, b, real, wg = self.diag
            e = self.lab("dg")
            p.raw("""    s_cmp_lg_u32 s2, %d
    s_cbranch_scc1 %s
    s_sub_u32 s60, s%d, s%d
    %s
    s_min_u32 s60, s60, 100000
    s_memrealtime s[62:63]
    s_waitcnt lgkmcnt(0)
%s_l:
    s_memrealtime s[64:65]
    s_waitcnt lgkmcnt(0)
    s_sub_u32 s64, s64, s62
    s_cmp_lt_u32 s64, s60
    s_cbranch_scc1 %s_l
%s:""" % (wg, e, sST + b, sST + a, "s_lshl_b32 s60, s60, 2" if real else "s_lshr_b32 s60, s60, 2", e, e, e))
            return
        if not self.stamps:
            return
        p.drain()
        self.stamp(11)
        p("s_lshl_b32 s%d, s2, 2" % sT)
        p("s_add_u32 s%d, s%d, s%d" % (sT, sT, sWAVE))
        p("s_lshl_b32 s%d, s%d, 6" % (sT, sT))
        p("s_add_u32 s%d, s%d, %d" % (sT, sT, WS_TS))
        p("v_mov_b32 v2, s%d" % sT)
        p("s_mov_b64 exec, 1")
        for k in range(12):
            p("v_mov_b32 v3, s%d" % (sST + k))
            p("buffer_store_dword v3, v2, %s, 0 offen offset:%d" % (srd(sWS), 4 * k))
        p("s_mov_b64 exec, -1")

    def poll(self, kind):
        if kind == "init":
            return Ins("buffer_load_dword v%d, off, %s, 0 sc1" % (vF, srd(sDBG)))
        ph = int(kind)
        return Ins("buffer_load_dword v%d, v%d, %s, 0 offen offset:%d sc1" % (vF, vP0 if ph == 0 else vP1, srd(sWS), 64 * ph))

    def check(self, kind):
        target = {"init": 1, "0": 15, "1": 15, "2": 16}[kind]
        sp, ok = self.lab("spin"), self.lab("ok")
        self.tail.raw("""%s:
    s_mov_b32 s%d, 400000
%s_l:
    s_sleep 1
    %s
    s_waitcnt vmcnt(0)
    v_cmp_gt_u32 vcc, %d, v%d
    s_sub_u32 s%d, s%d, 1
    s_cbranch_scc1 %s
    s_cbranch_vccnz %s_l
    s_branch %s""" % (sp, sT, sp, self.poll(kind).text, target, vF, sT, sT, ok, sp, ok))
        return [Ins("v_cmp_gt_u32 vcc, %d, v%d" % (target, vF)), Ins("s_cbranch_vccnz %s" % sp), Ins(ok + ":")]

    def signal(self, ph):
        return Ins("buffer_atomic_add v%d, v%d, %s, 0 offen offset:%d sc1" % (vOne, vSig2 if ph == 2 else vSig, srd(sWS), 64 * ph))

    def prologue(self, done):
        p, T = self.p, sT
        p.reset()
        self.stamp(0)
        p("s_cmp_ge_u32 s2, 256")
        p("s_cbranch_scc1 %s" % done)
        p("s_load_dwordx2 s[%d:%d], s[0:1], 0" % (sX, sX + 1))
        p("s_load_dwordx2 s[%d:%d], s[0:1], 8" % (sWA, sWA + 1))
        p("s_load_dwordx2 s[%d:%d], s[0:1], 48" % (sGATE, sGATE + 1))
        p("s_load_dwordx2 s[%d:%d], s[0:1], 72" % (sWS, sWS + 1))
        p("s_load_dwordx2 s[%d:%d], s[0:1], 16" % (sWO, sWO + 1))
        p("s_load_dwordx4 s[%d:%d], s[0:1], 32" % (sKA, sKA + 3))
        p("s_load_dwordx4 s[%d:%d], s[0:1], 56" % (sKA + 4, sKA + 7))
        p("v_and_b32 v1, 63, v0")
        p("v_lshrrev_b32 v2, 6, v0")
        p("s_and_b32 s%d, s2, 7" % sXCD)
        p("v_readfirstlane_b32 s%d, v2" % sWAVE)
        p("s_lshr_b32 s%d, s2, 3" % sJ)
        pc = self.lab("pc")
        p("s_getpc_b64 s[%d:%d]" % (T, T + 1))
        p(pc + ":")
        p("s_lshl_b32 s%d, s%d, 2" % (T + 2, sJ))
        p("s_add_u32 s%d, s%d, s%d" % (T + 2, T + 2, sWAVE))
        p("v_min_u32 v3, 2, v1")
        p("v_lshl_add_u32 v3, v3, 7, s%d" % (T + 2))
        p("v_lshlrev_b32 v3, 7, v3")
        p("v_min_u32 v3, L_code_end-%s-4, v3" % pc)
        p("global_load_dword v47, v3, s[%d:%d]" % (T, T + 1))
        for r, n in ((sX, 2048 * 1280), (sWA, 640 * 3840), (sWB, 640 * 3456), (sWS, WS_END), (sW2, 1728 * 1280),
                     (sWO, 640 * 1280), (sOUT, 2048 * 1280), (sDBG, 256), (sGATE, 1280)):
            p("s_mov_b32 s%d, %d" % (r + 2, n))
            p("s_mov_b32 s%d, 0x20000" % (r + 3))
        p("s_lshl_b32 s%d, s%d, 12" % (sW4K, sWAVE))

    def srd_rest(self):
        for k, r in enumerate((sWB, sW2, sOUT, sDBG)):
            self.p("s_mov_b64 s[%d:%d], s[%d:%d]" % (r, r + 1, sKA + 2 * k, sKA + 2 * k + 1))

    def mod(self, d, s, n):
        p = self.p
        p("s_mul_i32 s%d, s%d, %d" % (sT + 11, s, 65536 // n + 1))
        p("s_lshr_b32 s%d, s%d, 16" % (sT + 11, sT + 11))
        p("s_mul_i32 s%d, s%d, %d" % (sT + 11, sT + 11, n))
        p("s_sub_u32 s%d, s%d, s%d" % (d, s, sT + 11))

    def rot(self, d, sa, sb, co, n):
        p = self.p
        p("s_mul_i32 s%d, s%d, %d" % (sT + 9, sa, co[0]))
        p("s_mul_i32 s%d, s%d, %d" % (sT + 10, sb, co[1]))
        p("s_add_u32 s%d, s%d, s%d" % (sT + 9, sT + 9, sT + 10))
        if len(co) > 2:
            p("s_lshr_b32 s%d, s%d, %d" % (sT + 9, sT + 9, co[2]))
        self.mod(d, sT + 9, n)

    def p1_first(self):
        p, T = self.p, sT
        p("s_lshr_b32 s%d, s%d, 1" % (T, sXCD))
        p("s_mul_i32 s%d, s%d, 30" % (T, T))
        p("s_add_u32 s%d, s%d, s%d" % (T, T, sJ))
        p("s_lshr_b32 s%d, s%d, 3" % (sCB, T))
        p("s_and_b32 s%d, s%d, 7" % (T, T))
        p("s_and_b32 s%d, s%d, 1" % (T + 1, sXCD))
        p("s_lshl_b32 s%d, s%d, 3" % (T + 1, T + 1))
        p("s_add_u32 s%d, s%d, s%d" % (sRB, T, T + 1))
        p("s_lshl_b32 s%d, s%d, 2" % (sTB, sRB))
        p("s_add_u32 s%d, s%d, s%d" % (sTB, sTB, sWAVE))
        self.rot(T + 3, sRB, sCB, self.o["rotA"], 10)
        p("s_mul_i32 s%d, s%d, %d" % (sOffWA, T + 3, 64 * 3840))
        p("s_mul_i32 s%d, s%d, %d" % (sOffWB, T + 3, 64 * 3456))
        p("s_lshl_b32 s%d, s%d, 7" % (sOffX, T + 3))
        p("s_mov_b32 s%d, s%d" % (sOffG, sOffX))
        p("v_lshrrev_b32 v2, 4, v1")
        p("v_lshlrev_b32 v3, 2, v2")
        p("v_and_b32 v4, 15, v1")
        p("v_xor_b32 v4, v4, v3")
        p("s_lshl_b32 s%d, s%d, 4" % (T, sWAVE))
        p("v_add_u32 v5, s%d, v2" % T)
        p("v_mul_u32_u24 v6, 3840, v5")
        p("v_lshl_add_u32 v6, v4, 4, v6")
        p("s_lshl_b32 s%d, s%d, 8" % (T, sCB))
        p("v_add_u32 v%d, s%d, v6" % (vWA, T))
        for i in range(1, 4):
            p("v_add_u32 v%d, %d, v%d" % (vWA + i, i * (4 * 3840 - 1024), vWA))
        p("v_lshrrev_b32 v6, 3, v1")
        p("v_mul_u32_u24 v6, 1280, v6")
        p("v_and_b32 v7, 7, v1")
        p("v_xor_b32 v7, v7, v2")
        p("v_lshl_add_u32 v6, v7, 4, v6")
        p("s_mul_i32 s%d, s%d, %d" % (T, sTB, 32 * 1280))
        p("v_add_u32 v%d, s%d, v6" % (vX, T))
        p("v_xor_b32 v%d, 64, v%d" % (vX + 1, vX))
        p("v_add_u32 v%d, %d, v%d" % (vX + 2, 2 * (8 * 1280 - 1024), vX))
        p("v_add_u32 v%d, %d, v%d" % (vX + 3, 3 * (8 * 1280 - 1024), vX + 1))
        p("v_add_u32 v%d, %d, v%d" % (vX + 1, 1 * (8 * 1280 - 1024), vX + 1))
        p("v_lshlrev_b32 v7, 4, v1")
        p("s_mul_i32 s%d, s%d, 320" % (T, sWAVE))
        p("s_waitcnt lgkmcnt(0)")
        self.stamp(1)
        p.add(self.dma_w(0))
        p.add(self.dma_x(0))
        p("s_add_u32 m0, s%d, %d" % (T, GB))
        p("buffer_load_dwordx4 v7, %s, s%d offen lds" % (srd(sGATE), T), tag="W0")
        p.add(self.dma_w(1))
        p.add(self.dma_x(1))
        self.srd_rest()

    def p1_setup(self):
        p, T = self.p, sT
        p("s_cmp_ge_u32 s%d, 12" % sCB)
        p("s_cselect_b32 s%d, 8, 16" % T)
        p("s_cselect_b32 s%d, 7, 8" % (T + 1))
        p("s_cselect_b32 s%d, 1536, 0" % (T + 3))
        p("s_cselect_b32 s%d, 0x%x, 0" % (T + 4, OOB))
        p("s_lshl_b32 s%d, s%d, s%d" % (T + 5, sCB, T + 1))
        p("s_add_u32 s%d, s%d, s%d" % (T + 5, T + 5, T + 3))
        p("v_mul_u32_u24 v6, 3456, v5")
        p("v_lshl_add_u32 v6, v4, 4, v6")
        p("v_add_u32 v6, s%d, v6" % (T + 5))
        p("v_mov_b32 v7, 0x%x" % OOB)
        p("v_cmp_gt_u32 vcc, s%d, v4" % T)
        p("v_cndmask_b32 v%d, v7, v6, vcc" % vWB)
        for i in range(1, 4):
            p("v_add_u32 v%d, %d, v%d" % (vWB + i, i * (4 * 3456 - 1024), vWB))
        p("v_lshrrev_b32 v2, 5, v1")
        p("v_bfe_u32 v3, v1, 2, 2")
        p("v_lshl_add_u32 v4, v2, 3, v3")
        p("v_lshlrev_b32 v4, 8, v4")
        p("v_lshl_add_u32 v4, v3, 6, v4")
        p("v_bfe_u32 v5, v1, 4, 1")
        p("v_lshl_add_u32 v4, v5, 5, v4")
        p("v_and_b32 v5, 1, v1")
        p("v_lshl_add_u32 v4, v5, 4, v4")
        p("v_bfe_u32 v5, v1, 1, 1")
        p("v_lshl_add_u32 v%d, v5, 3, v4" % vTR)
        for ct in range(1, 4):
            p("v_xor_b32 v%d, %d, v%d" % (vTR + ct, ct * 64, vTR))
        for ct in range(4):
            p("v_add_u32 v%d, 0x10000, v%d" % (vTR2 + ct, vTR + ct))
        p("v_and_b32 v3, 31, v1")
        p("v_bfe_u32 v4, v1, 1, 3")
        p("v_xor_b32 v4, v4, v2")
        p("v_lshlrev_b32 v5, 7, v3")
        p("v_lshl_add_u32 v5, v4, 4, v5")
        p("s_add_u32 s%d, s%d, %d" % (T, sW4K, 4 * SLOT))
        p("v_add_u32 v%d, s%d, v5" % (vXR, T))
        for ks in range(1, 4):
            p("v_xor_b32 v%d, %d, v%d" % (vXR + ks, ks * 32, vXR))
        p("v_lshlrev_b32 v5, 4, v2")
        p("v_add_u32 v%d, %d, v5" % (vGA + 1, GB))
        p("v_add_u32 v%d, s%d, v%d" % (vGA, sOffG, vGA + 1))
        p("v_lshrrev_b32 v4, 3, v3")
        p("v_and_b32 v5, 7, v1")
        p("v_lshlrev_b32 v5, 4, v5")
        p("v_lshl_add_u32 v5, v2, 7, v5")
        p("s_mov_b32 s%d, %d" % (T, PHO))
        p("v_mad_u32_u24 v%d, v4, s%d, v5" % (vStB, T))
        p("v_or_b32 v%d, s%d, v%d" % (vStB2, T + 4, vStB))
        p("s_mov_b32 s%d, %d" % (T, PQK))
        p("v_mad_u32_u24 v%d, v4, s%d, v5" % (vStA, T))
        p("v_and_b32 v4, 19, v1")
        p("v_bfe_u32 v5, v1, 2, 1")
        p("v_lshl_add_u32 v4, v5, 3, v4")
        p("v_bfe_u32 v5, v1, 3, 1")
        p("v_lshl_add_u32 v4, v5, 2, v4")
        p("v_mul_u32_u24 v5, 10240, v2")
        p("v_lshl_add_u32 v4, v4, 4, v5")
        p("s_cmp_ge_u32 s%d, 10" % sCB)
        p("s_cselect_b64 vcc, -1, 0")
        p("v_cndmask_b32 v%d, v%d, v4, vcc" % (vStA, vStA))
        self.csel(T, 40960, 4 * PQK)
        self.csel(T + 1, WS_V - 10 * 2048, WS_QK)
        self.csel(T + 3, 20480, 256)
        p("s_mul_i32 s%d, s%d, s%d" % (sStA0, sTB, T))
        p("s_add_u32 s%d, s%d, s%d" % (sStA0, sStA0, T + 1))
        p("s_lshl_b32 s%d, s%d, 11" % (T, sCB))
        p("s_add_u32 s%d, s%d, s%d" % (sStA0, sStA0, T))
        p("s_add_u32 s%d, s%d, s%d" % (sStA1, sStA0, T + 3))
        p("s_mul_i32 s%d, s%d, %d" % (sStB, sTB, 4 * PHO))
        p("s_lshl_b32 s%d, s%d, 3" % (T, T + 5))
        p("s_add_u32 s%d, s%d, s%d" % (sStB, sStB, T))
        p("s_add_u32 s%d, s%d, %d" % (sStB, sStB, WS_HO))
        p("s_cmp_lt_u32 s%d, 5" % sCB)
        p("s_cselect_b32 s%d, %s, 1.0" % (sScale, f32(QSCALE)))
        p("s_mov_b32 s%d, s%d" % (sScale + 1, sScale))
        p("s_lshl_b32 s%d, s%d, 7" % (T, sTB))
        p("s_add_u32 s%d, s%d, %d" % (T, T, WS_G))
        p("s_cmp_lg_u32 s%d, 0" % sCB)
        p("s_cmov_b32 s%d, 0x%x" % (T, OOB))
        p("v_lshl_add_u32 v4, v3, 2, s%d" % T)
        p("v_lshlrev_b32 v5, 31, v2")
        p("v_or_b32 v%d, v4, v5" % vGst)
        p("s_lshl_b32 s%d, s%d, 8" % (T, sRB))
        p("v_mov_b32 v4, s%d" % T)
        p("v_cmp_eq_u32 vcc, 0, v0")
        p("v_cndmask_b32 v%d, v7, v4, vcc" % vSig)
        p("s_mov_b32 s%d, 0" % sHelp)

    def common_setup(self):
        p, T = self.p, sT
        p("s_and_b32 s%d, s%d, 1" % (T, sXCD))
        p("s_lshl_b32 s%d, s%d, 3" % (T, T))
        p("s_and_b32 s%d, s%d, 7" % (T + 1, sJ))
        p("s_add_u32 s%d, s%d, s%d" % (sRB2, T, T + 1))
        p("s_lshr_b32 s%d, s%d, 1" % (T, sXCD))
        p("s_lshl_b32 s%d, s%d, 2" % (T, T))
        p("s_lshr_b32 s%d, s%d, 3" % (T + 1, sJ))
        p("s_add_u32 s%d, s%d, s%d" % (sHP, T, T + 1))
        p("s_mul_i32 s%d, s%d, 640" % (T, sHP))
        p("s_lshl_b32 s%d, s%d, 2" % (sQB, sRB2))
        p("s_add_u32 s%d, s%d, s%d" % (sQB, sQB, sWAVE))
        p("s_mul_i32 s%d, s%d, %d" % (sQO, sQB, 4 * PQK))
        p("s_add_u32 s%d, s%d, s%d" % (sQO, sQO, T))
        p("s_add_u32 s%d, s%d, %d" % (sQO, sQO, WS_QK))
        p("s_mul_i32 s%d, s%d, %d" % (T + 3, sQB, 40960))
        p("s_add_u32 s%d, s%d, s%d" % (T + 3, T + 3, T))
        p("s_add_u32 s%d, s%d, %d" % (T + 3, T + 3, WS_V))
        for b in range(3):
            back = 2 - b
            p("s_sub_u32 s%d, s%d, %d" % (sKO + b, sQO, back * 16 * PQK - 80 * 128))
            p("s_sub_u32 s%d, s%d, %d" % (sVO + b, T + 3, back * 163840))
            if back:
                p("s_cmp_lt_u32 s%d, %d" % (sRB2, back))
                p("s_cmov_b32 s%d, 0x%x" % (sKO + b, OOB))
                p("s_cmov_b32 s%d, 0x%x" % (sVO + b, OOB))
        p("s_mul_i32 s%d, s%d, %d" % (sKM, sWAVE, 4 * 640))
        p("s_mul_i32 s%d, s%d, %d" % (sVM, sWAVE, 4 * 656))
        p("s_add_u32 s%d, s%d, %d" % (sVM, sVM, VB))
        p("s_lshl_b32 s%d, s%d, 7" % (sGO, sQB))
        p("s_add_u32 s%d, s%d, %d" % (sGO, sGO, WS_G))
        p("s_mul_i32 s%d, s%d, %d" % (sStO, sQB, 4 * PHO))
        p("s_add_u32 s%d, s%d, s%d" % (sStO, sStO, T))
        p("s_add_u32 s%d, s%d, %d" % (sStO, sStO, WS_HO + 216 * 128))
        p("s_mul_i32 s%d, s%d, 52" % (T, sJ))
        p("s_lshr_b32 s%d, s%d, 8" % (T, T))
        p("s_mul_i32 s%d, s%d, 5" % (T + 1, T))
        p("s_sub_u32 s%d, s%d, s%d" % (T + 1, sJ, T + 1))
        p("s_and_b32 s%d, s%d, 3" % (T + 2, sXCD))
        p("s_mul_i32 s%d, s%d, 6" % (T + 2, T + 2))
        p("s_add_u32 s%d, s%d, s%d" % (sMB, T + 2, T))
        p("s_lshr_b32 s%d, s%d, 2" % (T + 2, sXCD))
        p("s_mul_i32 s%d, s%d, 5" % (T + 2, T + 2))
        p("s_add_u32 s%d, s%d, s%d" % (sNB, T + 2, T + 1))
        self.rot(T, sMB, sNB, self.o["rot3"] + (1,), 27)
        p("s_mul_i32 s%d, s%d, 20480" % (sOffW2, T))
        p("s_lshl_b32 s%d, s%d, 8" % (sOffH, T))
        self.rot(T, sMB, sNB, self.o["roto"] + (1,), 10)
        p("s_mul_i32 s%d, s%d, 20480" % (sOffWO, T))
        p("s_lshl_b32 s%d, s%d, 8" % (sOffO, T))
        p("v_lshrrev_b32 v2, 3, v1")
        p("v_bfe_u32 v3, v1, 4, 1")
        p("v_lshlrev_b32 v3, 2, v3")
        p("v_and_b32 v4, 7, v1")
        p("v_xor_b32 v3, v3, v4")
        p("v_mul_u32_u24 v5, 1280, v2")
        p("v_lshl_add_u32 v5, v3, 4, v5")
        p("s_lshl_b32 s%d, s%d, 7" % (T, sNB))
        p("s_or_b32 s%d, s%d, s%d" % (T, T, sHelp))
        for d, n in ((vD3, 27), (vD3o, 10)):
            p("s_mul_i32 s%d, s%d, %d" % (T + 1, sWAVE, n * 20480))
            p("s_add_u32 s%d, s%d, s%d" % (T + 1, T + 1, T))
            p("v_add_u32 v%d, s%d, v5" % (d, T + 1))
            p("v_add_u32 v%d, %d, v%d" % (d + 1, 8 * 1280 - 1024, d))
        p("v_lshrrev_b32 v2, 5, v1")
        p("v_bfe_u32 v3, v1, 2, 2")
        p("v_lshl_add_u32 v5, v2, 3, v3")
        p("v_lshlrev_b32 v5, 7, v5")
        p("v_bfe_u32 v6, v1, 3, 1")
        p("v_lshl_add_u32 v5, v6, 6, v5")
        p("v_bfe_u32 v6, v1, 4, 1")
        p("v_lshl_add_u32 v5, v6, 5, v5")
        p("v_and_b32 v6, 1, v1")
        p("v_lshl_add_u32 v5, v6, 4, v5")
        p("v_bfe_u32 v6, v1, 1, 1")
        p("v_lshl_add_u32 v5, v6, 3, v5")
        p("v_add_u32 v%d, s%d, v5" % (vT3, sW4K))
        p("v_xor_b32 v%d, 64, v%d" % (vT3 + 1, vT3))
        for b in (1, 2):
            for ct in range(2):
                p("v_add_u32 v%d, 0x%x, v%d" % (vT3 + 2 * b + ct, b * 65536, vT3 + ct))
        p("v_bfe_u32 v5, v1, 3, 2")
        p("v_lshlrev_b32 v6, 4, v4")
        p("v_lshl_add_u32 v6, v2, 7, v6")
        p("s_mov_b32 s%d, %d" % (T + 2, PHO))
        p("v_mad_u32_u24 v%d, v5, s%d, v6" % (vQO, T + 2))
        p("s_mul_i32 s%d, s%d, 11" % (T + 1, sMB))
        p("s_mul_i32 s%d, s%d, %d" % (T + 2, T + 1, PHO))
        p("s_mul_i32 s%d, s%d, %d" % (T + 3, sWAVE, 27 * 256))
        p("s_add_u32 s%d, s%d, s%d" % (T + 2, T + 2, T + 3))
        p("s_add_u32 s%d, s%d, %d" % (T + 2, T + 2, WS_HO))
        p("s_or_b32 s%d, s%d, s%d" % (T + 2, T + 2, sHelp))
        p("v_add_u32 v%d, s%d, v%d" % (vA3, T + 2, vQO))
        p("v_add_u32 v%d, %d, v%d" % (vA3 + 1, 4 * PHO, vA3))
        p("v_add_u32 v%d, %d, v%d" % (vA3 + 2, 8 * PHO, vA3))
        p("v_mov_b32 v7, 0x%x" % OOB)
        p("v_cmp_gt_u32 vcc, 3, v5")
        p("v_cndmask_b32 v%d, v7, v%d, vcc" % (vA3 + 2, vA3 + 2))
        p("s_lshl_b32 s%d, s%d, 8" % (T, sRB2))
        p("v_mov_b32 v4, s%d" % T)
        p("v_cmp_eq_u32 vcc, 0, v0")
        p("v_cndmask_b32 v%d, v7, v4, vcc" % vSig2)
        p("v_mov_b32 v%d, 1" % vOne)
        p("v_min_u32 v4, 2, v1")
        p("v_sub_u32 v4, s%d, v4" % sRB2)
        p("v_max_i32 v4, 0, v4")
        p("v_lshlrev_b32 v%d, 8, v4" % vP0)
        p("v_min_u32 v4, 1, v1")
        p("v_mul_u32_u24 v4, 10, v4")
        p("v_add_u32 v4, s%d, v4" % (T + 1))
        p("v_lshrrev_b32 v4, 4, v4")
        p("v_min_u32 v4, 15, v4")
        p("v_lshlrev_b32 v%d, 8, v4" % vP1)

    WSLOT = [0, 1, 2, 3, 0, 1, 2, 3, 0, 1, 2, 7, 3, 0, 1, 2, 7, 3, 4, 5]

    @staticmethod
    def step_down(s, step, n):
        return [Ins("s_sub_u32 s%d, s%d, %d" % (s, s, step)), Ins("s_cmov_b32 s%d, %d" % (s, step * (n - 1)))]

    def dma_w(self, s):
        a = s < 10
        base, off, rs, step = (vWA, sOffWA, sWA, 64 * 3840) if a else (vWB, sOffWB, sWB, 64 * 3456)
        g = []
        for i in range(4):
            x = []
            if i == 0:
                x.append(Ins("s_add_u32 m0, s%d, %d" % (sW4K, self.WSLOT[s] * SLOT)))
            x.append(Ins("buffer_load_dwordx4 v%d, %s, s%d offen offset:%d lds" % (base + i, srd(rs), off, 1024 * i),
                         tag="W%d" % s))
            if i == 3:
                x += self.step_down(off, step, 10)
            g.append(x)
        return g

    def dma_x(self, s):
        g = []
        for i in range(4):
            x = []
            if i == 0:
                x.append(Ins("s_add_u32 m0, s%d, %d" % (sW4K, (4 + s % 3) * SLOT)))
            x.append(Ins("buffer_load_dwordx4 v%d, %s, s%d offen offset:%d lds" % (vX + i, srd(sX), sOffX, 1024 * i),
                         tag="X%d" % s))
            if i == 3:
                x += self.step_down(sOffX, 128, 10)
            g.append(x)
        return g

    def p1_reads(self, n):
        s, ks, ct = n // 16, (n // 4) % 4, n % 4
        slot = self.WSLOT[s]
        base = vTR + ct if slot < 4 else vTR2 + ct
        off = (slot % 4) * SLOT + ks * 4096
        fr = vFR + 4 * (n % 8)
        r = []
        if ct == 0 and s < 10:
            r.append(Ins("ds_read_b128 %s, v%d offset:%d" % (ar(16 * s + 4 * ks, 4), vXR + ks, (s % 3) * SLOT)))
        for i in range(2):
            r.append(Ins("ds_read_b64_tr_b16 %s, v%d offset:%d" % (vr(fr + 2 * i, 2), base, off + 1024 * i)))
        return r

    def gate_read(self, q):
        r = [Ins("ds_read_b128 %s, v%d offset:%d" % (vr(rGF + 4 * (q % 2), 4), vGA, 32 * (q % 4)))]
        if q % 4 == 3 and q < 39:
            r += self.step_down(sOffG, 128, 10)
            r.append(Ins("v_add_u32 v%d, s%d, v%d" % (vGA, sOffG, vGA + 1)))
        return r

    def p1_mfma(self, n, vrole):
        s, ks, ct = n // 16, (n // 4) % 4, n % 4
        acc = (accA if s < 10 else accB) + 16 * ct
        w = vr(vFR + 4 * (n % 8), 4)
        x = ar(16 * (s % 10) + 4 * ks, 4)
        c = "0" if (s % 10 == 0 and ks == 0) else vr(acc, 16)
        a, b = (x, w) if (vrole and s < 10) else (w, x)
        return Ins("v_mfma_f32_32x32x16_bf16 %s, %s, %s, %s" % (vr(acc, 16), a, b, c))

    def p1_range(self, n0, n1, vrole, pre, extra):
        p = self.p
        LOOK = 4
        for n in range(n0, n1):
            s, m = n // 16, n % 16
            p.add(self.p1_mfma(n, vrole))
            if m == 16 - LOOK and s + 1 < 20:
                p.wait_tag("W%d" % (s + 1), "X%d" % (s + 1), *pre.get(s + 1, []))
                p("s_barrier")
            if n + LOOK < 320:
                p.add(self.p1_reads(n + LOOK))
            for g in extra.get(n, []):
                p.add(g)
            if s < 10 and n % 4 == 3:
                q = n // 4
                p("v_mfma_f32_32x32x16_bf16 %s, %s, %s, %s" %
                  (vr(accG, 16), vr(rGF + 4 * (q % 2), 4), ar(4 * q, 4), "0" if q == 0 else vr(accG, 16)))
                if q + 2 < 40:
                    p.add(self.gate_read(q + 2))
                for g in extra.get(("g", q), []):
                    p.add(g)

    def w3_place(self, k):
        t = {0: 8, 1: 8, 2: 9, 3: 9, 4: 6, 5: 6, 6: 8, 7: 8, 8: 9, 9: 9, 10: 7, 11: 7, 12: 6, 13: 6, 14: 8,
             15: 4, 16: 4, 17: 5, 18: 5, 19: 9, 20: 9, 21: 7, 22: 7, 23: 6, 24: 6, 25: 8, 26: 8,
             27: 0, 28: 0, 29: 1, 30: 1, 31: 2, 32: 2, 33: 3, 34: 3, 35: 4, 36: 4}[k]
        half = k % 2 if k < 15 else (k + 1) % 2
        return t * SLOT + half * 2048

    def w3_dma(self, k):
        rs, off, d, n = (sW2, sOffW2, vD3, 27) if k < 27 else (sWO, sOffWO, vD3o, 10)
        return [[Ins("s_add_u32 m0, s%d, %d" % (sW4K, self.w3_place(k))),
                 Ins("buffer_load_dwordx4 v%d, %s, s%d offen lds" % (d, srd(rs), off), tag="w%d" % k)],
                [Ins("buffer_load_dwordx4 v%d, %s, s%d offen offset:1024 lds" % (d + 1, srd(rs), off), tag="w%d" % k)] +
                self.step_down(off, 20480, n)]

    @staticmethod
    def w3_reg(k, ct, n=4, o=0):
        if k < 12:
            return ar(160 + 8 * k + 4 * ct + o, n)
        if k < 15:
            return ar(136 + 8 * (k - 12) + 4 * ct + o, n)
        if k < 27:
            return vr(rW3 + 8 * (k % 2) + 4 * ct + o, n)
        return ar(160 + 8 * (k - 27) + 4 * ct + o, n)

    def w3_tr(self, k):
        a = self.w3_place(k)
        r = [Ins("ds_read_b64_tr_b16 %s, v%d offset:%d" %
                 (self.w3_reg(k, ct, 2, 2 * i), vT3 + 2 * (a >> 16) + ct, (a & 0xffff) + 512 * i), tag="t%d" % k)
             for ct in range(2) for i in range(2)]
        return [[pseudo("wait_tag", {"w%d" % k})] + r[:2], r[2:]]

    FRS = [(k, rt) for k in range(27) for rt in range(3)] + [(27 + k, rt) for rt in range(3) for k in range(10)]

    def act(self, f):
        k, rt = self.FRS[f]
        base, off = (vA3, sOffH) if k < 27 else (vA3o, sOffO)
        r = [Ins("buffer_load_dwordx4 %s, v%d, %s, s%d offen sc1" % (ar(4 * (f % NRING), 4), base + rt, srd(sWS), off))]
        if k >= 27:
            r += self.step_down(sOffO, 256, 10)
        elif rt == 2:
            r += self.step_down(sOffH, 256, 27)
        return r

    def kv_groups(self):
        g = [[Ins("buffer_load_dwordx4 %s, v%d, %s, s%d offen sc1" % (vr(rQA, 4), vQ1, srd(sWS), sQO))],
             [Ins("buffer_load_dwordx2 %s, v%d, %s, s%d offen offset:256 sc1" % (vr(rQ2A, 2), vQ2, srd(sWS), sQO))],
             [Ins("buffer_load_dwordx4 %s, v%d, %s, s%d offen offset:384 sc1" % (vr(rQB, 4), vQ1, srd(sWS), sQO))]]
        for b in range(3):
            for (m, mo, d, so, pitch) in ((sKM, KB + b * 16 * 640, vKD, sKO + b, 640), (sVM, b * 16 * 656, vVD, sVO + b, 656)):
                for hf in range(2):
                    x = []
                    if hf == 0:
                        x.append(Ins("s_add_u32 m0, s%d, %d" % (m, mo)))
                    x.append(Ins("s_mov_b32 exec_hi, 0xff"))
                    for i in (2 * hf, 2 * hf + 1):
                        x.append(Ins("buffer_load_dwordx4 v%d, %s, s%d offen offset:%d sc1 lds" % (d + i, srd(sWS), so, pitch * i),
                                     tag="KV%d" % b))
                    x.append(Ins("s_mov_b32 exec_hi, -1"))
                    g.append(x)
        g.append([Ins("buffer_load_dword v%d, v%d, %s, s%d offen sc1" % (vG2, vGL, srd(sWS), sGO))])
        return g

    def p2_vsetup(self):
        p, T = self.p, sT + 1
        p("v_lshlrev_b32 v%d, 4, v1" % vKD)
        p("v_mov_b32 v%d, v%d" % (vVD, vKD))
        for i in range(1, 4):
            p("v_add_u32 v%d, %d, v%d" % (vKD + i, i * (PQK - 640), vKD))
            p("v_add_u32 v%d, %d, v%d" % (vVD + i, i * (10240 - 656), vKD))
        p("v_lshrrev_b32 v2, 5, v1")
        p("v_and_b32 v3, 31, v1")
        p("v_lshrrev_b32 v4, 3, v3")
        p("v_and_b32 v5, 7, v1")
        p("v_lshlrev_b32 v5, 4, v5")
        p("v_mul_u32_u24 v6, %d, v4" % PQK)
        p("v_add_u32 v6, v6, v5")
        p("v_lshl_add_u32 v%d, v2, 7, v6" % vQ1)
        p("v_lshl_add_u32 v%d, v2, 3, v6" % vQ2)
        p("v_lshlrev_b32 v%d, 2, v3" % vGL)
        p("v_mul_u32_u24 v6, 640, v4")
        p("v_add3_u32 v6, v6, v5, s%d" % sKM)
        p("v_lshl_add_u32 v%d, v2, 7, v6" % vKA)
        p("v_lshl_add_u32 v%d, v2, 3, v6" % vK2)
        p("v_and_b32 v6, 3, v1")
        p("v_bfe_u32 v7, v1, 2, 1")
        p("v_lshl_add_u32 v7, v7, 3, v6")
        p("v_bfe_u32 v4, v1, 3, 1")
        p("v_lshl_add_u32 v7, v4, 2, v7")
        p("v_add_u32 v4, 24, v7")
        p("v_add_u32 v5, 16, v6")
        p("v_cmp_gt_u32 s[%d:%d], 16, v3" % (T + 1, T + 2))
        p("v_add_u32 v6, 20, v6")
        p("v_cmp_gt_u32 s[%d:%d], 24, v3" % (T + 3, T + 4))
        p("v_cndmask_b32 v7, v5, v7, s[%d:%d]" % (T + 1, T + 2))
        p("v_cndmask_b32 v4, v6, v4, s[%d:%d]" % (T + 1, T + 2))
        p("v_mul_u32_u24 v5, 656, v2")
        p("v_cndmask_b32 v7, 40, v7, s[%d:%d]" % (T + 3, T + 4))
        p("v_cndmask_b32 v4, 40, v4, s[%d:%d]" % (T + 3, T + 4))
        p("v_add_u32 v5, s%d, v5" % sVM)
        p("v_lshl_add_u32 v%d, v7, 4, v5" % vVA)
        p("v_lshl_add_u32 v%d, v4, 4, v5" % vVB)
        big = 2.0 ** 100
        p("v_lshlrev_b32 v4, 2, v2")
        p("v_sub_u32 v4, v3, v4")
        p("v_cvt_f32_i32 v4, v4")
        p("v_add_f32 v4, 0.5, v4")
        p("v_mul_f32 v4, %s, v4" % f32(big))
        for r in range(16):
            c = 8 * (r // 4) + r % 4
            p("v_add_f32 v5, %s, v4" % f32(-c * big))
            p("v_min_f32 v%d, 0, v5" % (rDiag + r))
            p("v_min_f32 v%d, 0, -v5" % (rFar + r))
        p("v_lshrrev_b32 v4, 4, v1")
        p("v_add_u32 v4, s%d, v4" % sRB2)
        p("v_mov_b32 v5, 0x3f803f80")
        p("v_cmp_le_u32 s[%d:%d], 2, v4" % (T + 1, T + 2))
        p("v_min_u32 v6, 48, v1")
        p("v_mul_u32_u24 v139, 656, v6")
        p("v_cndmask_b32 v140, 0, v5, s[%d:%d]" % (T + 1, T + 2))
        for k in range(1, 4):
            p("v_mov_b32 v%d, v140" % (140 + k))

    def ones_write(self):
        return Ins("ds_write_b128 v139, v[140:143] offset:%d" % (VB + 640), tag="ones")

    def epi_a(self):
        out = []
        for ct in range(4):
            for t in range(2):
                a = accA + 16 * ct + 8 * t
                pk = vPk + 4 * t
                v = [Ins("v_pk_mul_f32 %s, %s, s[%d:%d]" % (vr(a + 2 * u, 2), vr(a + 2 * u, 2), sScale, sScale + 1)) for u in range(4)]
                v += [Ins("v_cvt_pk_bf16_f32 v%d, v%d, v%d" % (pk + u, a + 2 * u, a + 2 * u + 1)) for u in range(4)]
                st = Ins("buffer_store_dwordx4 %s, v%d, %s, s%d offen offset:%d sc1" %
                         (vr(pk, 4), vStA, srd(sWS), sStA1 if t else sStA0, 512 * ct), tag="stA")
                out.append((v, st))
        return out

    def st_h(self, k):
        ct, t = k // 2, k % 2
        return Ins("buffer_store_dwordx4 %s, v%d, %s, s%d offen offset:%d sc1" %
                   (vr(rH + 4 * k, 4), vStB if ct < 2 else vStB2, srd(sWS), sStB, 512 * ct + 256 * t), tag="stH")

    def p1_main(self):
        p = self.p
        extra, pre = {}, {}

        def put(n, g):
            extra.setdefault(n, []).append(g)

        def spread(gs, n0, span):
            for k, g in enumerate(gs):
                put(n0 + (k * span) // len(gs), g)

        spread(self.dma_w(2) + self.dma_x(2), 0, 12)
        for s in range(1, 8):
            spread(self.dma_w(s + 2) + self.dma_x(s + 2), 16 * s - 3, 14)
        w3 = lambda *ks: [g for k in ks for g in self.w3_dma(k)]
        spread(self.dma_w(10) + self.dma_w(11), 16 * 8 - 3, 14)
        spread(self.dma_w(12) + w3(0, 1), 16 * 9 - 3, 14)
        put(16 * 9 + 10, self.poll("init"))
        ea = self.epi_a()
        gate = self.cap(lambda: self.p(
            "v_mul_f32 v2, %s, v%d\nv_exp_f32 v2, v2\nv_add_f32 v2, 1.0, v2\nv_rcp_f32 v2, v2\nv_sub_f32 v%d, 1.0, v2" %
            (f32(-math.log2(math.e)), accG, vG)))
        for s in range(10, 14):
            n0 = 16 * s - 3
            d = self.dma_w(s + 3)
            for k, g in enumerate(d):
                put(n0 + 4 * k, g)
            for hf in range(2):
                v, st = ea[2 * (s - 10) + hf]
                b = 16 * s + 1 + 8 * hf
                for k, x in enumerate(v):
                    put(b + k // 2, x)
                put(b + 5, st)
        spread(gate, 16 * 10 + 6, 3)
        put(16 * 11 + 7, Ins("buffer_store_dword v2, v%d, %s, 0 offen sc1" % (vGst, srd(sWS)), tag="stA"))
        put(16 * 12 + 7, self.check("init"))
        tr = lambda *ks: [g for k in ks for g in self.w3_tr(k)]
        spread(tr(0, 1), 16 * 12 + 8, 8)
        spread(self.dma_w(17) + w3(2), 16 * 14 - 3, 16)
        spread(self.dma_w(18) + w3(3), 16 * 15 - 3, 16)
        pre[16] = ["stA"]
        put(16 * 16 - 4, self.signal(0))
        spread(self.dma_w(19) + w3(4), 16 * 16 - 3, 16)
        spread(w3(5, 6, 7), 16 * 17 - 3, 16)
        spread(tr(2, 3), 16 * 17 - 2, 8)
        put(16 * 18 - 3, [pseudo("wait_ldstag", {"t3"})])
        spread(w3(8, 9, 10), 16 * 18 - 3, 12)
        put(16 * 18 + 1, self.poll("0"))
        spread(self.cap(self.p2_vsetup), 16 * 14 + 2, 16 * 5 - 8)
        put(16 * 19 - 2, self.stamp_items(3))
        put(16 * 19 - 2, self.check("0"))
        put(16 * 19 - 2, self.stamp_items(4))
        put(16 * 19 - 2, self.ones_write())
        spread(self.kv_groups(), 16 * 19 - 1, 16)
        spread(tr(4, 5), 16 * 19 + 12, 4)

        p.wait_tag("W0", "X0")
        p("s_barrier")
        for n in range(4):
            p.add(self.p1_reads(n))
        p.add(self.gate_read(0))
        p.add(self.gate_read(1))
        lv, lb = self.lab("vrole"), self.lab("partb")
        p("s_cmp_ge_u32 s%d, 10" % sCB)
        p("s_cbranch_scc1 %s" % lv)
        mark = len(p.items)
        self.p1_range(0, 160, False, pre, extra)
        p(lb + ":")
        keep, alt = self.p, Prog()
        alt.items = list(keep.items[:mark])
        alt(lv + ":")
        self.p = alt
        self.p1_range(0, 160, True, pre, extra)
        alt("s_branch %s" % lb)
        txt = alt.finalize()
        self.tail.raw(txt[txt.index(lv + ":"):])
        self.p = keep
        self.stamp(2)
        self.p1_range(160, 320, False, pre, extra)
        p.add(w3(11))
        p.add(tr(6, 7))
        for k in range(8):
            a = accB + 8 * k
            for u in range(4):
                p("v_pk_mul_f32 %s, %s, %s op_sel_hi:[1,0]" % (vr(a + 2 * u, 2), vr(a + 2 * u, 2), vr(vG, 2)))
            for u in range(4):
                p("v_cvt_pk_bf16_f32 v%d, v%d, v%d" % (rH + 4 * k + u, a + 2 * u, a + 2 * u + 1))
            for u in range(4):
                p("v_pk_max_i16 v%d, v%d, 0" % (rH + 4 * k + u, rH + 4 * k + u))
            if k == 1:
                p.add(self.st_h(0))
            if k == 3:
                p.wait_lds("t5")
                p.add(w3(12))
            if k == 5:
                p.add(self.st_h(1))
            if k == 7:
                p.add(w3(13))

    def helper(self):
        p, T = self.p, sT
        p("s_waitcnt lgkmcnt(0)")
        self.srd_rest()
        skip = self.lab("init")
        p("s_cmp_lg_u32 s2, 240")
        p("s_cbranch_scc1 %s" % skip)
        p("s_cmp_lg_u32 s%d, 0" % sWAVE)
        p("s_cbranch_scc1 %s" % skip)
        p("v_lshlrev_b32 v2, 6, v1")
        p("v_mov_b32 v3, 0")
        p("buffer_store_dword v3, v2, %s, 0 offen sc1" % srd(sWS))
        p("s_waitcnt vmcnt(0)")
        p("v_mov_b32 v4, 1")
        p("s_mov_b64 exec, 1")
        p("buffer_store_dword v4, off, %s, 0 sc1" % srd(sDBG))
        p("s_mov_b64 exec, -1")
        p(skip + ":")
        if self.o["warm"]:
            p("s_sub_u32 s%d, s2, 240" % T)
            p("s_lshl_b32 s%d, s%d, 2" % (T, T))
            p("s_add_u32 s%d, s%d, s%d" % (T, T, sWAVE))
            p("s_lshl_b32 s%d, s%d, 13" % (T, T))
            p("v_lshlrev_b32 v2, 7, v1")
            p("v_add_u32 v2, s%d, v2" % T)
            lst = [(sW2, 5), (sWO, 2)]
            if self.o["warm"] > 1:
                lst = [(sWB, 5)] + lst
            for r, n in lst:
                for i in range(n):
                    p("s_mov_b32 s%d, %d" % (T, i << 19))
                    p("buffer_load_dword v47, v2, %s, s%d offen" % (srd(r), T))
        p("s_mov_b32 s%d, 0x%x" % (sHelp, OOB))
        p("s_mov_b32 s%d, 0" % sStB)
        for r in (vStB, vStB2, vSig):
            p("v_mov_b32 v%d, 0x%x" % (r, OOB))
        self.common_setup()
        self.p2_vsetup()
        p.add(self.ones_write())
        p.add(self.poll("init"))
        p.add(self.check("init"))
        p.add(self.poll("0"))
        p.add(self.check("0"))
        p.add(self.kv_groups())
        p.drain()

    def rdK1(self, u):
        return "ds_read_b128 %s, v%d offset:%d" % (vr(rK1, 4), vKA, KB + (u // 2) * 2560 + 384 * (u % 2))

    def rdK2(self, i):
        return "ds_read_b64 %s, v%d offset:%d" % (vr(rK2, 2), vK2, KB + i * 2560 + 256)

    def rdV(self, u, t):
        return "ds_read_b128 %s, v%d offset:%d" % (vr(rV1 if t else rV0, 4), vVB if u % 2 else vVA, (4 * (u // 2) + 2 * t) * 656)

    def qk1(self, u):
        i = u // 2
        c = vr(rFar, 16) if i == 0 else vr(rDiag, 16) if i == 8 else "0"
        return "v_mfma_f32_32x32x16_bf16 %s, %s, %s, %s" % (vr(rS + 16 * (u % 2), 16), vr(rK1, 4), vr(rQB if u % 2 else rQA, 4), c)

    def qk2(self, u):
        s = vr(rS + 16 * (u % 2), 16)
        return "v_mfma_f32_32x32x8_bf16 %s, %s, %s, %s" % (s, vr(rK2, 2), vr(rQ2B if u % 2 else rQ2A, 2), s)

    def pv(self, u, t):
        o = vr(rO + 16 * (u % 2), 16)
        return "v_mfma_f32_32x32x16_bf16 %s, %s, %s, %s" % (o, vr(rV1 if t else rV0, 4), vr(rP + 4 * t, 4),
                                                           "0" if (u < 2 and t == 0) else o)

    NEARLY = 12

    def p2(self):
        p = self.p
        NU = 18
        side = {}

        def put(q, g):
            side.setdefault(q, []).append(g)

        def spread(gs, q0, span):
            for k, g in enumerate(gs):
                put(q0 + (k * span) // len(gs), g)

        w3 = lambda *ks: [g for k in ks for g in self.w3_dma(k)]
        tr = lambda *ks: [g for k in ks for g in self.w3_tr(k)]
        wl = lambda k: [pseudo("wait_ldstag", {"t%d" % k})]
        seq = []
        seq += [[self.st_h(2)]] + [wl(7)] + w3(14) + tr(8) + [[self.st_h(3)]] + w3(15) + tr(9)
        seq += [[self.st_h(4)]] + w3(16) + tr(10) + [[self.st_h(5)]] + w3(17) + tr(11)
        seq += [[self.st_h(6)]] + w3(18) + tr(12) + [[self.st_h(7)]] + [wl(9)] + w3(19) + tr(13)
        spread(seq, 0, 28)
        put(27, [pseudo("wait_tag", {"KV2"}), Ins("s_barrier")])
        spread(w3(20) + tr(14) + [wl(11)] + w3(21, 22), 28, 10)
        put(39, [pseudo("wait_tag", {"stH"}), Ins("s_barrier"), self.signal(1)])
        spread([wl(13)] + w3(23, 24) + [wl(14)] + w3(25), 40, 10)
        put(50, self.poll("1"))
        spread(w3(26), 51, 4)
        put(59, self.stamp_items(6))
        put(59, self.check("1"))
        put(59, self.stamp_items(7))
        spread([self.act(f) for f in range(self.NEARLY)], 59, 12)

        ex = lambda u, r: "v_exp_f32 v%d, v%d" % (rE + r % 8, rS + 16 * (u % 2) + r)
        cv = lambda k: "v_cvt_pk_bf16_f32 v%d, v%d, v%d" % (rP + k, rE + (2 * k) % 8, rE + (2 * k + 1) % 8)

        def sd(q):
            for g in side.get(q, []):
                p.add(g)

        p("v_cmp_gt_u32 vcc, 32, v1")
        for k in range(2):
            p("v_cndmask_b32 v%d, v%d, 0, vcc" % (rQ2B + k, rQ2A + k))
            p("v_cndmask_b32 v%d, 0, v%d, vcc" % (rQ2A + k, rQ2A + k))
        p.wait_tag("KV0", "KV1")
        p.wait_lds("ones")
        p("s_barrier")
        self.stamp(5)
        p(self.rdK1(0))
        p(self.rdK2(0))
        p(self.rdV(0, 0))
        p(self.qk1(0))
        p(self.rdK1(1))
        p(self.qk2(0))
        for u in range(NU):
            nx = u + 1 < NU
            if nx:
                p(self.qk1(u + 1))
                if u + 2 < NU:
                    p(self.rdK1(u + 2))
            sd(4 * u)
            if u:
                p(cv(6)); p(cv(7))
            for r in range(0, 4):
                p(ex(u, r))
            if u:
                p(self.pv(u - 1, 1))
            p(self.rdV(u, 1))
            sd(4 * u + 1)
            p(cv(0)); p(cv(1))
            for r in range(4, 8):
                p(ex(u, r))
            if nx:
                p(self.qk2(u + 1))
                if (u + 1) % 2 == 1 and u + 2 < NU:
                    p(self.rdK2((u + 2) // 2))
            sd(4 * u + 2)
            p(cv(2)); p(cv(3))
            for r in range(8, 12):
                p(ex(u, r))
            p(self.pv(u, 0))
            if nx:
                p(self.rdV(u + 1, 0))
            sd(4 * u + 3)
            p(cv(4)); p(cv(5))
            for r in range(12, 16):
                p(ex(u, r))
        p(cv(6)); p(cv(7))
        p(self.pv(NU - 1, 1))
        self.p2_epi()

    def p2_epi(self):
        p = self.p
        slow, back = self.lab("slow"), self.lab("norm")
        lA, lB = rO + 12, rO + 16 + 12
        for hd in range(2):
            o = rO + 16 * hd
            p("v_pk_mul_f32 v[%d:%d], %s, 0" % (4 + 2 * hd, 5 + 2 * hd, vr(o, 2)))
            for k in range(1, 7):
                p("v_pk_fma_f32 v[%d:%d], %s, 0, v[%d:%d]" % (4 + 2 * hd, 5 + 2 * hd, vr(o + 2 * k, 2), 4 + 2 * hd, 5 + 2 * hd))
        p("v_max_f32 v2, v%d, v%d" % (lA, lB))
        p("v_min_f32 v3, v%d, v%d" % (lA, lB))
        p("v_pk_add_f32 v[4:5], v[4:5], v[6:7]")
        p("v_add_f32 v2, v2, v4")
        p("v_add_f32 v3, v3, v5")
        p("v_cmp_nge_f32 vcc, %s, v2" % f32(2.0 ** 60))
        p("s_mov_b64 s[%d:%d], vcc" % (sT, sT + 1))
        p("v_cmp_nle_f32 vcc, %s, v3" % f32(2.0 ** -60))
        p("s_or_b64 vcc, vcc, s[%d:%d]" % (sT, sT + 1))
        if self.force_slow:
            p("s_branch %s" % slow)
        else:
            p("s_cbranch_vccnz %s" % slow)
        p(back + ":")
        pk = rH
        for hd in range(2):
            o = rO + 16 * hd
            p("v_rcp_f32 v2, v%d" % (o + 12))
            p("v_mul_f32 v2, v%d, v2" % vG2)
            for k in range(6):
                p("v_pk_mul_f32 %s, %s, v[2:3] op_sel_hi:[1,0]" % (vr(o + 2 * k, 2), vr(o + 2 * k, 2)))
            for k in range(4):
                p("v_cvt_pk_bf16_f32 v%d, v%d, v%d" % (pk + 4 * hd + k, o + 2 * k, o + 2 * k + 1))
            for k in range(2):
                p("v_cvt_pk_bf16_f32 v%d, v%d, v%d" % (pk + 8 + 2 * hd + k, o + 8 + 2 * k, o + 9 + 2 * k))
            p("buffer_store_dwordx4 %s, v%d, %s, s%d offen offset:%d sc1" % (vr(pk + 4 * hd, 4), vQO, srd(sWS), sStO, 384 * hd), tag="stO")
        p("s_mov_b32 exec_hi, 0")
        p("buffer_store_dwordx4 %s, v%d, %s, s%d offen offset:256 sc1" % (vr(pk + 8, 4), vQO, srd(sWS), sStO), tag="stO")
        p("s_mov_b32 exec_hi, -1")
        self.p2_slow(slow, back)

    def p2_slow(self, slow, back):
        q = Prog()
        T, S, P = sT, rS, rP
        aK1, aK2, aV, vM = 4, 5, 6, 7
        q(slow + ":")
        q("s_nop 15")
        q("s_sub_u32 s%d, 8, s%d" % (T, sQB))
        q("s_max_i32 s%d, s%d, 0" % (T, T))
        for hd in range(2):
            O = rO + 16 * hd
            for ps in range(2):
                lp, nm, nm2 = self.lab("sl"), self.lab("nm"), self.lab("nm2")
                q("s_mov_b32 s%d, s%d" % (T + 1, T))
                q("s_mul_i32 s%d, s%d, 2560" % (T + 2, T))
                q("s_mul_i32 s%d, s%d, 2624" % (T + 3, T))
                q("v_add_u32 v%d, s%d, v%d" % (aK1, T + 2, vKA))
                q("v_add_u32 v%d, s%d, v%d" % (aK2, T + 2, vK2))
                q("v_add_u32 v%d, s%d, v%d" % (aV, T + 3, vVB if hd else vVA))
                if ps == 0:
                    q("v_mov_b32 v%d, 0xff800000" % vM)
                else:
                    for r in range(16):
                        q("v_mov_b32 v%d, 0" % (O + r))
                q(lp + ":")
                q("ds_read_b128 %s, v%d offset:%d" % (vr(rK1, 4), aK1, KB + 384 * hd))
                q("ds_read_b64 %s, v%d offset:%d" % (vr(rK2, 2), aK2, KB + 256))
                q("ds_read_b128 %s, v%d" % (vr(rV0, 4), aV))
                q("ds_read_b128 %s, v%d offset:%d" % (vr(rV1, 4), aV, 2 * 656))
                q("s_waitcnt lgkmcnt(0)")
                q("v_mfma_f32_32x32x16_bf16 %s, %s, %s, 0" % (vr(S, 16), vr(rK1, 4), vr(rQB if hd else rQA, 4)))
                q("v_mfma_f32_32x32x8_bf16 %s, %s, %s, %s" % (vr(S, 16), vr(rK2, 2), vr(rQ2B if hd else rQ2A, 2), vr(S, 16)))
                q("s_nop 15")
                q("v_mov_b32 v2, 0xff800000")
                for which, reg, lab in ((0, rFar, nm), (8, rDiag, nm2)):
                    q("s_cmp_lg_u32 s%d, %d" % (T + 1, which))
                    q("s_cbranch_scc1 %s" % lab)
                    for r in range(16):
                        q("v_cmp_eq_f32 vcc, 0, v%d" % (reg + r))
                        q("v_cndmask_b32 v%d, v2, v%d, vcc" % (S + r, S + r))
                    q(lab + ":")
                if ps == 0:
                    for r in range(0, 16, 2):
                        q("v_max3_f32 v%d, v%d, v%d, v%d" % (vM, S + r, S + r + 1, vM))
                else:
                    for r in range(16):
                        q("v_sub_f32 v%d, v%d, v%d" % (S + r, S + r, vM))
                        q("v_exp_f32 v%d, v%d" % (S + r, S + r))
                    for k in range(8):
                        q("v_cvt_pk_bf16_f32 v%d, v%d, v%d" % (P + k, S + 2 * k, S + 2 * k + 1))
                    for t in range(2):
                        q("v_mfma_f32_32x32x16_bf16 %s, %s, %s, %s" % (vr(O, 16), vr(rV1 if t else rV0, 4), vr(P + 4 * t, 4), vr(O, 16)))
                q("v_add_u32 v%d, 2560, v%d" % (aK1, aK1))
                q("v_add_u32 v%d, 2560, v%d" % (aK2, aK2))
                q("v_add_u32 v%d, 2624, v%d" % (aV, aV))
                q("s_add_u32 s%d, s%d, 1" % (T + 1, T + 1))
                q("s_cmp_lt_u32 s%d, 9" % (T + 1))
                q("s_cbranch_scc1 %s" % lp)
                if ps == 0:
                    q("v_mov_b32 v2, v%d" % vM)
                    q("v_permlane32_swap_b32 v2, v%d" % vM)
                    q("v_max_f32 v%d, v2, v%d" % (vM, vM))
        q("s_nop 15")
        q("s_branch %s" % back)
        self.cold.raw(q.finalize())

    def p3_vsetup(self):
        p, T = self.p, sT + 1
        p("s_mul_i32 s%d, s%d, %d" % (T, sWAVE, -17 * 256))
        p("s_add_u32 s%d, s%d, %d" % (T, T, 216 * 128))
        for rt in range(3):
            p("v_add_u32 v%d, s%d, v%d" % (vA3o + rt, T, vA3 + rt))
        p("v_lshrrev_b32 v2, 3, v1")
        p("v_and_b32 v4, 7, v1")
        p("s_mul_i32 s%d, s%d, 11" % (T, sMB))
        p("s_add_u32 s%d, s%d, s%d" % (T, T, sWAVE))
        p("s_mul_i32 s%d, s%d, %d" % (T, T, 8 * 1280))
        p("s_lshl_b32 s%d, s%d, 7" % (T + 1, sNB))
        p("s_add_u32 s%d, s%d, s%d" % (T, T, T + 1))
        p("v_mul_u32_u24 v5, 1280, v2")
        p("v_lshl_add_u32 v5, v4, 4, v5")
        p("v_add_u32 v%d, s%d, v5" % (vO3, T))
        p("v_add_u32 v%d, %d, v%d" % (vO3 + 1, 32 * 1280, vO3))
        p("s_add_u32 s%d, s%d, 1" % (T, sWAVE))
        p("s_lshr_b32 s%d, s%d, 2" % (T, T))
        p("s_lshl_b32 s%d, s%d, 31" % (T, T))
        p("s_add_u32 s%d, s%d, %d" % (T, T, 64 * 1280))
        p("v_add_u32 v%d, s%d, v%d" % (vO3 + 2, T, vO3))
        p("v_lshlrev_b32 v5, 1, v4")
        p("v_xor_b32 v5, v5, v2")
        p("v_lshlrev_b32 v5, 4, v5")
        p("v_lshl_add_u32 v5, v2, 8, v5")
        p("s_lshr_b32 s%d, s%d, 1" % (T, sWAVE))
        p("s_lshl_b32 s%d, s%d, 14" % (T, T))
        p("s_and_b32 s%d, s%d, 1" % (T + 1, sWAVE))
        p("s_lshl_b32 s%d, s%d, 11" % (T + 1, T + 1))
        p("s_add_u32 s%d, s%d, s%d" % (T, T, T + 1))
        p("v_add_u32 v%d, s%d, v5" % (vRR, T))
        p("v_xor_b32 v%d, 16, v%d" % (vRR + 1, vRR))
        p("v_lshrrev_b32 v2, 5, v1")
        p("v_lshlrev_b32 v5, 1, v2")
        p("v_xor_b32 v5, v5, v4")
        p("v_lshlrev_b32 v5, 4, v5")
        p("v_and_b32 v3, 15, v1")
        p("v_lshl_add_u32 v5, v3, 8, v5")
        p("v_bfe_u32 v3, v1, 4, 1")
        p("v_lshl_add_u32 v5, v3, 14, v5")
        p("v_add_u32 v%d, s%d, v5" % (vRW, sW4K))
        for k, x in ((1, 16), (2, 64), (3, 80)):
            p("v_xor_b32 v%d, %d, v%d" % (vRW + k, x, vRW))

    def p3(self):
        p = self.p
        side = {}

        def put(n, x):
            side.setdefault(n, []).append(x)

        def spread(gs, n0, span):
            for k, g in enumerate(gs):
                put(n0 + (k * span) // len(gs), g)

        nf = len(self.FRS)
        LOOK = self.o.get("look3", 18)
        nxt = self.NEARLY
        first_o = None
        for f in range(nf):
            want = min(nf, f + 1 + min(LOOK, self.NEARLY + f))
            k = 0
            while nxt < want:
                if nxt == 81:
                    first_o = 2 * f + (k % 2)
                    put(first_o, self.stamp_items(9))
                    put(first_o, self.check("2"))
                put(2 * f + (k % 2), self.act(nxt))
                nxt += 1
                k += 1
        put(first_o - 30, self.poll("2"))
        spread(self.cap(self.p3_vsetup), 1, 24)
        put(30, [pseudo("wait_tag", {"stO"}), Ins("s_barrier"), self.signal(2)])
        w3 = lambda *ks: [g for k in ks for g in self.w3_dma(k)]
        spread(w3(*range(27, 35)), 31, 64)
        for k in range(15, 27):
            t = self.w3_tr(k)
            put(6 * (k - 1), t[0])
            put(6 * (k - 1) + 1, t[1])
        put(6 * 16 + 2, [pseudo("wait_ldstag", {"t16"})])
        spread(w3(35, 36), 6 * 16 + 2, 8)
        for k in range(27, 37):
            t = self.w3_tr(k)
            n = 6 * (k - 11) + 3
            put(n, t[0])
            put(n + 1, t[1])
        red_w, red_r = {}, {}
        aux = " sc1" if self.o["outsc"] else ""
        for rt in range(3):
            buf = (rt % 2) * 32768
            w = []
            for ct in range(2):
                for t in range(2):
                    for u in range(2):
                        a = acc3 + 32 * rt + 16 * ct + 8 * t + 4 * u
                        w.append(Ins("ds_write_b128 v%d, %s offset:%d" % (vRW + 2 * t + u, vr(a, 4), buf + 128 * ct), tag="rw"))
            r = []
            for src in range(4):
                for u in range(2):
                    r.append(Ins("ds_read_b128 %s, v%d offset:%d" % (vr(rSum + 8 * src + 4 * u, 4), vRR + u, buf + 4096 * src)))
            f = []
            for a, b in ((0, 8), (16, 24), (0, 16)):
                for k in range(4):
                    f.append(Ins("v_pk_add_f32 %s, %s, %s" % (vr(rSum + a + 2 * k, 2), vr(rSum + a + 2 * k, 2), vr(rSum + b + 2 * k, 2))))
            for k in range(4):
                f.append(Ins("v_cvt_pk_bf16_f32 v%d, v%d, v%d" % (rOut + k, rSum + 2 * k, rSum + 2 * k + 1)))
            f.append(Ins("buffer_store_dwordx4 %s, v%d, %s, 0 offen%s" % (vr(rOut, 4), vO3 + rt, srd(sOUT), aux)))
            red_w[rt], red_r[rt] = w, (r, f)
        for rt in range(2):
            n0 = 162 + 20 * (rt + 1)
            for k, x in enumerate(red_w[rt]):
                put(n0 + 2 + k, x)
            put(n0 + 11, [pseudo("wait_ldstag", {"rw"}), Ins("s_barrier")])
            for k, x in enumerate(red_r[rt][0]):
                put(n0 + 11 + k // 2, x)
            for k, x in enumerate(red_r[rt][1]):
                put(min(n0 + 16 + k // 4, n0 + 19), x)
        for f in range(nf):
            k, rt = self.FRS[f]
            for ct in range(2):
                acc = vr(acc3 + 32 * rt + 16 * ct, 16)
                p("v_mfma_f32_32x32x16_bf16 %s, %s, %s, %s" %
                  (acc, self.w3_reg(k, ct), ar(4 * (f % NRING), 4), "0" if k == 0 else acc))
                for x in side.get(2 * f + ct, []):
                    p.add(x)
        self.stamp(10)
        p.add(red_w[2])
        p.wait_lds("rw")
        p("s_barrier")
        p.add(red_r[2][0])
        p.add(red_r[2][1])

    def build(self):
        name = NAME + "_kernel"
        self.p, self.tail, self.cold = Prog(), Prog(), Prog()
        p = self.p
        done, lh, l2, lx, fin = (self.lab(x) for x in ("done", "helper", "p2", "hexit", "fin"))
        self.prologue(done)
        p("s_cmp_ge_u32 s%d, 30" % sJ)
        p("s_cbranch_scc1 %s" % lh)
        self.p1_first()
        self.p1_setup()
        self.common_setup()
        self.p1_main()
        p(l2 + ":")
        self.p2()
        self.stamp(8)
        p("s_cmp_ge_u32 s%d, 30" % sJ)
        p("s_cbranch_scc1 %s" % lx)
        self.p3()
        p(fin + ":")
        self.flush_stamps()
        self.p = Prog()
        self.p(lx + ":")
        self.p("s_waitcnt vmcnt(0)")
        self.p("s_barrier")
        self.p.add(self.signal(2))
        self.p("s_endpgm")
        self.p(lh + ":")
        self.helper()
        self.p("s_branch %s" % l2)
        self.tail.raw(self.p.finalize())
        txt = "; @launch grid=(256,1,1) block=(256,1,1) lds=163840\n"
        txt += '.amdgcn_target "amdgcn-amd-amdhsa--gfx950"\n.text\n'
        txt += ".globl %s\n.p2align 8\n.type %s,@function\n%s:\n" % (name, name, name)
        txt += p.finalize() + done + ":\n    s_endpgm\n" + self.tail.finalize()
        txt += "L_code_end:\n" + self.cold.finalize()
        txt += """.section .rodata,"a"
.p2align 6
.amdhsa_kernel %s
  .amdhsa_next_free_vgpr 512
  .amdhsa_next_free_sgpr 102
  .amdhsa_accum_offset 256
  .amdhsa_group_segment_fixed_size 0
  .amdhsa_kernarg_size 80
  .amdhsa_user_sgpr_count 2
  .amdhsa_user_sgpr_kernarg_segment_ptr 1
  .amdhsa_system_sgpr_workgroup_id_x 1
  .amdhsa_float_denorm_mode_32 3
.end_amdhsa_kernel
""" % name
        return txt


if __name__ == "__main__":
    import argparse, ast
    ap = argparse.ArgumentParser()
    ap.add_argument("-o", default="k.s")
    ap.add_argument("--stamps", action="store_true")
    ap.add_argument("--slow", action="store_true")
    ap.add_argument("--diag", default=None)
    ap.add_argument("--opt", default="{}")
    a = ap.parse_args()
    open(a.o, "w").write(Gen(stamps=a.stamps, force_slow=a.slow, opt=ast.literal_eval(a.opt),
                             diag=tuple(int(x) for x in a.diag.split(",")) if a.diag else None).build())
```
